```python
import torch

def _softmax(x, axis=-1):
    return torch.softmax(x, dim=axis)
def _gelu(x):
    return torch.nn.functional.gelu(x, approximate="tanh")
def _silu(x):
    return torch.nn.functional.silu(x)
def _sigmoid(x):
    return torch.sigmoid(x)
def _layernorm(x, axis=-1, eps=1e-5):
    m = x.mean(dim=axis, keepdim=True)
    v = x.var(dim=axis, keepdim=True, unbiased=False)
    return (x - m) / torch.sqrt(v + eps)
def _scatter_add(tgt, idx, src, axis=0):
    return tgt.clone().index_add_(axis, idx, src)
def _segment_sum(src, seg, n):
    out = torch.zeros((n,) + src.shape[1:], dtype=src.dtype)
    return out.index_add_(0, seg, src)
def _pad(x, pw):
    flat = tuple(v for pair in reversed(pw) for v in pair)
    return torch.nn.functional.pad(x, flat)

kernel_name = 'concat_heads__grouped_kv_mqa__spectral_gfnet__prompt'

def setup_inputs():

    _w = (lambda a: (lambda t: t.to(torch.bfloat16) if t.is_floating_point() else t)(torch.as_tensor(a)))
    def _A_setup():
        B, S, D, H = 1, 2048, 640, 32
        Dh = D // H
        return {
            "x": _w((lambda *s: torch.randn(*s, dtype=torch.bfloat16) * 0.05)(B, S, D)),
            "wq": _w((lambda *s: torch.randn(*s, dtype=torch.bfloat16) * 0.8)(D, H * Dh)),
            "wk": _w((lambda *s: torch.randn(*s, dtype=torch.bfloat16) * 0.8)(D, Dh)),
            "wv": _w((lambda *s: torch.randn(*s, dtype=torch.bfloat16) * 0.05)(D, Dh)),
            "wo": _w((lambda *s: torch.randn(*s, dtype=torch.bfloat16) * 0.05)(H * Dh, D)),
        }
    _A_in = _A_setup()

    def _B_setup():
        B, S, D = 1, 2048, 640
        Df = D // 2 + 1
        return {
            "x": _w((lambda *s: torch.randn(*s, dtype=torch.bfloat16) * 0.05)(B, S, D)),
            "w_r": _w((lambda *s: torch.randn(*s, dtype=torch.bfloat16) * 1.6)(S, Df) * 0.02),
            "w_i": _w((lambda *s: torch.randn(*s, dtype=torch.bfloat16) * 1.6)(S, Df) * 0.02),
        }
    _B_in = _B_setup()

    return {
        "A_x": _A_in["x"],
        "A_wq": _A_in["wq"],
        "A_wk": _A_in["wk"],
        "A_wv": _A_in["wv"],
        "A_wo": _A_in["wo"],
        "B_x": _B_in["x"],
        "B_w_r": _B_in["w_r"],
        "B_w_i": _B_in["w_i"],
    }

def reference(A_x, A_wq, A_wk, A_wv, A_wo, B_x, B_w_r, B_w_i):
    def _A_ref(x, wq, wk, wv, wo):
        B, S, D = x.shape
        H = 32
        Dh = D // H
        q = (lambda x, *d: x.permute(*d))((x @ wq).reshape(B, S, H, Dh), 0, 2, 1, 3)
        k = x @ wk
        v = x @ wv
        scores = torch.einsum("bhqd,bkd->bhqk", q, k) * (Dh ** -0.5)
        p = _softmax(scores, axis=-1)
        o = torch.einsum("bhqk,bkd->bhqd", p, v)
        return (lambda x, *d: x.permute(*d))(o, 0, 2, 1, 3).reshape(B, S, H * Dh) @ wo

    def _B_ref(x, w_r, w_i):
        B, S, D = x.shape
        X = (lambda x, axes=(-2,-1): torch.fft.rfft2(x.float(), dim=axes))(x, axes=(-2, -1))
        W = w_r + 1j * w_i
        X = X * W
        y = (lambda x, s, axes=(-2,-1): torch.fft.irfft2(x, s=s, dim=axes).to(torch.bfloat16))(X, (S, D), axes=(-2, -1))
        return y

    a = _A_ref(A_x, A_wq, A_wk, A_wv, A_wo)
    b = _B_ref(B_x, B_w_r, B_w_i)
    return torch.concatenate([a, b], axis=-1)
```

```python
import re, sys

class Asm:
    def __init__(self):
        self.lines = []
        self.uid = 0
    def __call__(self, s):
        for l in s.split("\n"):
            l = l.strip()
            if l:
                self.lines.append(l)
    def c(self, s):
        self.lines.append("; " + s)
    def label(self, name):
        self.lines.append(name + ":")
    def newlabel(self, p="L"):
        self.uid += 1
        return f"{p}_{self.uid}"
    def nop(self, n):
        while n > 0:
            k = min(n, 16)
            self(f"s_nop {k-1}")
            n -= k
    def text(self):
        out = []
        for l in self.lines:
            if l.endswith(":") or l.startswith("."):
                out.append(l)
            else:
                out.append("    " + l)
        return "\n".join(out) + "\n"

def vr(b, n=1):
    return f"v{b}" if n == 1 else f"v[{b}:{b+n-1}]"
def sr(b, n=1):
    return f"s{b}" if n == 1 else f"s[{b}:{b+n-1}]"

def interleave(a, b):
    out = []
    na, nb = len(a), len(b)
    j = 0
    for i, x in enumerate(a):
        out.append(x)
        while j < nb and (j + 1) * na <= (i + 1) * nb:
            out.append(b[j]); j += 1
    out += b[j:]
    return out

def interleave_front(a, b):
    out = []
    na, nb = len(a), len(b)
    j = 0
    for i, x in enumerate(a):
        while j < nb and j * na <= i * nb:
            out.append(b[j]); j += 1
        out.append(x)
    out += b[j:]
    return out

REG = re.compile(r"(?<![\w.])(-?\|?)([vsa])(?:(\d+)|\[(\d+):(\d+)\])")
def regs_of(op):
    op = op.strip()
    r = set()
    if op in ("vcc",): return {"vcc"}
    if op in ("exec",): return {"exec"}
    if op == "m0": return {"m0"}
    if op in ("vcc_lo", "vcc_hi"): return {"vcc"}
    if op in ("exec_lo", "exec_hi"): return {"exec"}
    m = re.fullmatch(r"-?\|?(?:abs\()?([vsa])(?:(\d+)|\[(\d+):(\d+)\])\)?\|?", op)
    if m:
        k = m.group(1)
        if m.group(2) is not None:
            return {k + m.group(2)}
        return {k + str(i) for i in range(int(m.group(3)), int(m.group(4)) + 1)}
    return r

TRANS = ("v_exp_f32", "v_log_f32", "v_rcp_f32", "v_rsq_f32", "v_sqrt_f32", "v_sin_f32", "v_cos_f32", "v_exp_f16", "v_rcp_iflag_f32")
def passes(mn):
    if "32x32x4bf16" in mn or "32x32x4_2b" in mn: return 16
    if "32x32" in mn: return 8
    if "16x16" in mn: return 4
    return 2

class Ins:
    def __init__(self, text, idx):
        self.text = text; self.idx = idx
        t = text.split(";")[0].strip()
        parts = t.split(None, 1)
        self.mn = parts[0]
        rest = parts[1] if len(parts) > 1 else ""
        ops = []; cur = ""; d = 0
        for ch in rest:
            if ch == "[": d += 1
            if ch == "]": d -= 1
            if ch == "," and d == 0:
                ops.append(cur.strip()); cur = ""
            else:
                cur += ch
        if cur.strip(): ops.append(cur.strip())
        self.mods = ""
        if ops:
            last = ops[-1].split()
            if len(last) > 1:
                ops[-1] = last[0]; self.mods = " ".join(last[1:])
        self.ops = ops
        mn = self.mn
        self.w = set(); self.r = set()
        self.kind = "other"
        R = [regs_of(o) for o in ops]
        U = lambda xs: set().union(*xs) if xs else set()
        self.A = self.B = self.C = set()
        if mn.startswith("v_mfma") or mn.startswith("v_smfmac"):
            self.kind = "mfma"; self.w = R[0]; self.A = R[1]; self.B = R[2]; self.C = R[3]; self.r = U(R[1:])
            self.np = passes(mn)
        elif mn.startswith("v_cmp"):
            self.kind = "valu"; self.w = R[0]; self.r = U(R[1:])
            if mn.startswith("v_cmpx"): self.w |= {"exec"}
        elif mn.startswith("v_permlane") and "swap" in mn:
            self.kind = "valu"; self.w = U(R); self.r = U(R)
        elif mn.startswith("v_"):
            self.kind = "valu"; self.w = set(R[0]); self.r = U(R[1:])
            if "_co_" in mn:
                self.w |= R[1]; self.r = U(R[2:])
            if mn.startswith(("v_fmac", "v_pk_fmac", "v_mac", "v_writelane")) or "UNUSED_PRESERVE" in self.mods:
                self.r |= R[0]
            if mn.startswith("v_cndmask") and len(ops) == 3: self.r |= {"vcc"}
        elif mn.startswith("ds_"):
            self.kind = "ds"
            if mn.startswith(("ds_read", "ds_bpermute", "ds_permute", "ds_swizzle")) or "_rtn" in mn:
                self.w = R[0]; self.r = U(R[1:])
            else:
                self.r = U(R)
        elif mn.startswith(("buffer_", "global_")):
            self.kind = "vmem"
            islds = " lds" in (" " + self.mods) or "load_lds" in mn
            self.lds = islds
            if "load" in mn and not islds:
                self.w = R[0]; self.r = U(R[1:])
            elif "atomic" in mn and "sc0" in self.mods:
                self.w = R[0]; self.r = U(R)
            else:
                self.r = U(R)
            if islds: self.r |= {"m0"}
            self.store = "store" in mn
            self.data = R[0] if (self.store and mn.startswith("buffer_")) else (R[1] if self.store else set())
        elif mn.startswith(("s_load", "s_memtime", "s_memrealtime", "s_buffer_load")):
            self.kind = "smem"; self.w = R[0]; self.r = U(R[1:])
        elif mn.startswith("s_"):
            self.kind = "salu"
            if mn.startswith(("s_cmp", "s_bitcmp")):
                self.r = U(R); self.w = {"scc"}
            elif mn.startswith(("s_cbranch", "s_branch", "s_nop", "s_waitcnt", "s_barrier", "s_endpgm", "s_setprio", "s_sleep")):
                pass
            else:
                self.w = set(R[0]) if R else set(); self.r = U(R[1:])
                if "saveexec" in mn: self.w |= {"exec"}; self.r |= {"exec"}
        self.states = 1
        if mn == "s_nop": self.states = int(ops[0], 0) + 1
        self.trans = any(mn.startswith(t) for t in TRANS)

def need(p, c):
    n = 0
    vw = {x for x in p.w if x[0] in "va" and x != "vcc"}
    sw = {x for x in p.w if x[0] == "s" and x != "scc"} | ({"vcc"} & p.w)
    if p.kind == "valu":
        if c.kind == "mfma" and vw & c.r: n = max(n, 2)
        if p.trans and c.kind == "valu" and not c.trans and vw & (c.r): n = max(n, 1)
        if c.kind == "valu" and c.mn.startswith("v_permlane") and vw & c.r: n = max(n, 2)
        if c.kind == "valu" and c.mn.startswith(("v_readlane", "v_readfirstlane")) and vw & c.r: n = max(n, 1)
        if c.kind == "valu" and "dpp" in (c.mn + c.mods) and vw & c.r: n = max(n, 2)
        if c.kind in ("valu", "mfma") and sw & c.r: n = max(n, 2)
        if c.kind == "vmem" and sw & c.r: n = max(n, 5)
        if "exec" in p.w and c.kind == "mfma": n = max(n, 4)
        if ("sdwa" in p.mn or "dst_sel" in p.mods) and c.kind == "valu" and vw & (c.r | c.w): n = max(n, 1)
    if p.kind == "salu" and "m0" in p.w and c.kind == "vmem" and getattr(c, "lds", False): n = max(n, 1)
    if p.kind == "mfma":
        k = {2: 0, 4: 1, 8: 2, 16: 3}[p.np]
        if c.kind == "mfma":
            if p.w & (c.A | c.B): n = max(n, [5, 8, 12, 20][k])
            if p.w & c.C:
                if p.w == c.C and p.np == c.np: n = max(n, [2, 0, 0, 0][k])
                else: n = max(n, [4, 6, 10, 18][k])
            elif p.w & c.w:
                if not (p.w == c.w and p.np == c.np): n = max(n, [4, 6, 10, 18][k])
        elif c.kind in ("valu",):
            if p.w & (c.r | c.w): n = max(n, [5, 8, 12, 20][k])
            if p.C & c.w: n = max(n, [1, 3, 7, 15][k])
        elif c.kind in ("vmem", "ds"):
            if p.w & (c.r | c.w): n = max(n, [5, 8, 12, 20][k])
    if p.kind == "vmem" and p.store and ("x3" in p.mn or "x4" in p.mn):
        if p.data & c.w: n = max(n, 2 if c.kind == "valu" else 1)
    return n

def parse(text, never=(), always=()):
    ins = []; labels = {}
    for line in text.split("\n"):
        t = line.split(";")[0].strip()
        if not t or t.startswith("."): continue
        if t.endswith(":"):
            labels[t[:-1]] = len(ins); continue
        ins.append(Ins(t, len(ins)))
    succ = []
    for i, x in enumerate(ins):
        s = []
        if x.mn == "s_endpgm": pass
        elif x.mn == "s_branch": s = [labels[x.ops[0]]]
        elif x.mn.startswith("s_cbranch"):
            s = [labels[x.ops[0]], i + 1]
            pre = x.ops[0].rsplit("_", 1)[0]
            if pre in never: s = [i + 1]
            if pre in always: s = [labels[x.ops[0]]]
        else: s = [i + 1]
        succ.append([j for j in s if j < len(ins)])
    return ins, labels, succ

def check_hazards(text, verbose=True):
    ins, labels, succ = parse(text)
    pred = [[] for _ in ins]
    for i, s in enumerate(succ):
        for j in s: pred[j].append(i)
    errs = []
    for c in ins:
        if c.kind in ("other",) or c.mn in ("s_nop", "s_waitcnt", "s_barrier"): continue
        seen = {}
        st = [(p, 0) for p in pred[c.idx]]
        while st:
            i, d = st.pop()
            if d >= 20 or seen.get(i, 99) <= d: continue
            seen[i] = d
            p = ins[i]
            n = need(p, c)
            if n > d: errs.append((c.idx, f"HAZARD need {n} have {d}: [{p.idx}] {p.text}  ->  [{c.idx}] {c.text}"))
            for q in pred[i]: st.append((q, d + p.states))
    errs = sorted(set(errs))
    if verbose:
        for _, e in errs[:40]: print(e)
    return errs

def check_waits(text, entries, verbose=True, maxstates=64, never=(), always=()):
    ins, labels, succ = parse(text, never, always)
    errs = set()
    seen = [set() for _ in ins]
    work = [(labels[e], (), (), False) for e in entries]
    overflow = set()
    while work:
        i, vm, lg, smem = work.pop()
        key = (vm, lg, smem)
        if key in seen[i]: continue
        if len(seen[i]) >= maxstates:
            overflow.add(i); continue
        seen[i].add(key)
        x = ins[i]
        touch = x.r | x.w
        if x.mn != "s_waitcnt":
            for q, nm in ((vm, "vm"), (lg, "lgkm")):
                for j in q:
                    if j < 0: continue
                    d = ins[j].w
                    if d & touch and not (x.kind == ins[j].kind and not (d & x.r) and x.kind in ("ds",) and False):
                        errs.add(f"WAIT({nm}) [{j}] {ins[j].text}  ->  [{i}] {x.text}")
        if x.mn == "s_waitcnt":
            m = re.search(r"vmcnt\((\d+)\)", x.text)
            if m:
                n = int(m.group(1)); vm = vm[len(vm) - n:] if n < len(vm) else vm
                if n == 0: vm = ()
            m = re.search(r"lgkmcnt\((\d+)\)", x.text)
            if m:
                n = int(m.group(1))
                if n == 0: lg = (); smem = False
                elif not smem: lg = lg[len(lg) - n:] if n < len(lg) else lg
        elif x.kind == "vmem":
            vm = (vm + ((i if x.w else -1),))[-64:]
        elif x.kind == "ds":
            lg = (lg + ((i if x.w else -1),))[-32:]
        elif x.kind == "smem":
            lg = (lg + (i,))[-32:]; smem = True
        for j in succ[i]: work.append((j, vm, lg, smem))
    if verbose:
        for e in sorted(errs)[:40]: print(e)
        if overflow: print("wait-check state overflow at", len(overflow), "points (first:", ins[min(overflow)].text, ")")
    return errs
```

```python
from asmlib import *
import math, struct

QF  = 0x000000
OF  = 0x280000
X1Q = 0x500000
WQ  = 0x7A0000
ZQ  = 0xA40000
KB  = 0xCE0000
VB  = 0xD00000
TAB = 0xD20000
WS_END = 0xD40000
PITCH = 5248
NX = 2048 * 640 * 2
NW = 640 * 640 * 2
NKV = 640 * 20 * 2
NWF = 2048 * 321 * 2
NOUT = 2048 * 1280 * 2

CFG = dict(wt="sc0 sc1", wtz="sc0 sc1", wto="", spinmax=200000)

def f32(x):
    return "0x%08x" % struct.unpack("<I", struct.pack("<f", x))[0]

def srd(a, d, base, size):
    a(f"s_mov_b32 s{d}, s{base}")
    a(f"s_mov_b32 s{d+1}, s{base+1}")
    a(f"s_mov_b32 s{d+2}, {size}")
    a(f"s_mov_b32 s{d+3}, 0x20000")

def kernel_head(a, name):
    a(f".globl {name}")
    a(".p2align 8")
    a(f".type {name},@function")
    a.label(name)

def kernel_desc(name, vgpr=256, sgpr=96):
    return f""".section .rodata,"a"
.p2align 6
.amdhsa_kernel {name}
  .amdhsa_next_free_vgpr {vgpr}
  .amdhsa_next_free_sgpr {sgpr}
  .amdhsa_accum_offset {vgpr}
  .amdhsa_group_segment_fixed_size 0
  .amdhsa_kernarg_size 88
  .amdhsa_user_sgpr_count 2
  .amdhsa_user_sgpr_kernarg_segment_ptr 1
  .amdhsa_system_sgpr_workgroup_id_x 1
.end_amdhsa_kernel
"""

S_AX, S_WQ, S_WK, S_WV, S_WO, S_BX, S_WR, S_WI = 4, 6, 8, 10, 12, 14, 16, 18
S_WS, S_WAVE, S_L = 20, 22, 23
SRD_X, SRD_W, SRD_WS, SRD_2 = 24, 28, 32, 36
S_OUT = 40
V_LANE = 1

def prologue(a, endlbl, flag_addr=None):
    a(f"s_cmp_ge_u32 s2, 256")
    a(f"s_cbranch_scc1 {endlbl}")
    a("s_load_dwordx16 s[4:19], s[0:1], 0")
    a(f"s_load_dwordx2 s[{S_WS}:{S_WS+1}], s[0:1], 80")
    a(f"s_load_dwordx2 s[{S_OUT}:{S_OUT+1}], s[0:1], 64")
    a("v_lshrrev_b32 v2, 6, v0")
    a(f"v_and_b32 v{V_LANE}, 63, v0")
    a(f"v_readfirstlane_b32 s{S_WAVE}, v2")
    a("s_and_b32 s3, s2, 7")
    a("s_lshl_b32 s3, s3, 5")
    a(f"s_lshr_b32 s{S_L}, s2, 3")
    a(f"s_add_u32 s{S_L}, s{S_L}, s3")
    if flag_addr is not None:
        a("v_mov_b32 v2, 0")
        a(f"v_mov_b32 v3, {flag_addr}")
        a("v_lshl_add_u32 v3, v1, 2, v3")
        a("ds_write_b32 v3, v2")
    a("s_waitcnt lgkmcnt(0)")
    if flag_addr is not None:
        a("s_barrier")
    srd(a, SRD_WS, S_WS, WS_END)

def sincos_angles(a, dst_c, dst_s, arg, tmp):
    a(f"v_fract_f32 v{tmp}, v{arg}")
    if dst_c is not None: a(f"v_cos_f32 v{dst_c}, v{tmp}")
    if dst_s is not None: a(f"v_sin_f32 v{dst_s}, v{tmp}")
```

```python
from common import *

SLOT = 20480
G_FLG = 133120
G_STAGE = 122880
G_LDS = 133376

V_XA, V_WA = 2, 5
V_XR, V_WR = 8, 14
V_FW, V_FR, V_FV, V_FD, V_T = 18, 19, 20, 24, 21
V_ACC = 28
V_F = 52
S_RB, S_G, S_XB, S_WB, S_T0, S_T1, S_SP, S_WSTR, S_T2 = 44, 45, 46, 47, 48, 49, 50, 51, 52

def gemm_setup(a, kern, ncolg, nwg, exitlbl):
    a(f"s_cmp_ge_u32 s{S_L}, {nwg}")
    a(f"s_cbranch_scc1 {exitlbl}")
    magic = (65536 + ncolg - 1) // ncolg
    for L in range(256): assert (L * magic) >> 16 == L // ncolg
    a(f"s_mul_i32 s{S_RB}, s{S_L}, {magic}")
    a(f"s_lshr_b32 s{S_RB}, s{S_RB}, 16")
    a(f"s_mul_i32 s{S_T0}, s{S_RB}, {ncolg}")
    a(f"s_sub_u32 s{S_G}, s{S_L}, s{S_T0}")
    a(f"s_mul_i32 s{S_XB}, s{S_WAVE}, 3072")
    a(f"s_lshl_b32 s{S_WB}, s{S_WAVE}, 11")
    a(f"s_add_u32 s{S_WB}, s{S_WB}, 12288")
    if kern == "k1":
        srd(a, SRD_X, S_AX, NX)
        a(f"s_mul_i32 s{S_T0}, s{S_RB}, 96")
        a(f"s_mul_i32 s{S_T1}, s{S_WAVE}, 24")
        a(f"s_add_u32 s{S_T0}, s{S_T0}, s{S_T1}")
        a("v_lshrrev_b32 v22, 3, v1")
        a("v_and_b32 v23, 7, v1")
        for t in range(3):
            a(f"v_add_u32 v21, s{S_T1}, v22")
            a(f"v_add_u32 v21, {8*t}, v21")
            a("v_bfe_u32 v21, v21, 1, 3")
            a("v_xor_b32 v21, v21, v23")
            a(f"v_add_u32 v20, s{S_T0}, v22")
            a(f"v_add_u32 v20, {8*t}, v20")
            a("v_mul_u32_u24 v20, 1280, v20")
            a(f"v_lshl_add_u32 v{V_XA+t}, v21, 4, v20")
    else:
        a(f"s_mul_i32 s{S_T0}, s{S_RB}, 768")
        a(f"s_add_u32 s{S_T0}, s{S_T0}, {OF}")
        a(f"s_mul_i32 s{S_T1}, s{S_WAVE}, 192")
        for e in range(768): assert (e * 1366) >> 16 == e // 48
        for t in range(3):
            a(f"v_add_u32 v20, s{S_T1}, v1")
            a(f"v_add_u32 v20, {64*t}, v20")
            a("v_mul_u32_u24 v21, 1366, v20")
            a("v_lshrrev_b32 v21, 16, v21")
            a("v_mul_u32_u24 v22, 48, v21")
            a("v_sub_u32 v20, v20, v22")
            a("v_bfe_u32 v22, v21, 1, 1")
            a("v_lshlrev_b32 v22, 3, v22")
            a("v_xor_b32 v20, v20, v22")
            a("v_lshlrev_b32 v21, 14, v21")
            a("v_lshl_add_u32 v20, v20, 4, v21")
            a(f"v_add_u32 v{V_XA+t}, s{S_T0}, v20")

def gemm_w_dense(a, sptr):
    srd(a, SRD_W, sptr, NW)
    a(f"s_mov_b32 s{S_WSTR}, {64*1280}")
    a(f"s_lshl_b32 s{S_T0}, s{S_WAVE}, 4")
    a(f"s_lshl_b32 s{S_T1}, s{S_G}, 7")
    for t in range(2):
        a("v_lshrrev_b32 v22, 3, v1")
        a(f"v_add_u32 v22, s{S_T0}, v22")
        a(f"v_add_u32 v22, {8*t}, v22")
        a("v_bfe_u32 v21, v22, 1, 1")
        a(f"v_or_b32 v21, {2*t}, v21")
        a("v_lshlrev_b32 v21, 1, v21")
        a("v_and_b32 v23, 7, v1")
        a("v_xor_b32 v21, v21, v23")
        a("v_mul_u32_u24 v22, 1280, v22")
        a("v_lshl_add_u32 v22, v21, 4, v22")
        a(f"v_add_u32 v{V_WA+t}, s{S_T1}, v22")

def gemm_w_kv(a):
    a(f"s_cmp_ge_u32 s{S_WAVE}, 2")
    a(f"s_cselect_b32 s{SRD_W}, s{S_WV}, s{S_WK}")
    a(f"s_cselect_b32 s{SRD_W+1}, s{S_WV+1}, s{S_WK+1}")
    a(f"s_mov_b32 s{SRD_W+2}, {NKV}")
    a(f"s_mov_b32 s{SRD_W+3}, 0x20000")
    a(f"s_mov_b32 s{S_WSTR}, 2560")
    a(f"s_and_b32 s{S_T0}, s{S_WAVE}, 1")
    a(f"s_lshl_b32 s{S_T0}, s{S_T0}, 11")
    a(f"v_lshl_add_u32 v{V_WA}, v1, 4, s{S_T0}")
    a(f"v_add_u32 v{V_WA+1}, 1024, v{V_WA}")

def gemm_dma(a, kern, ch):
    out = []
    slot = ch % 6
    xs = SRD_X if kern == "k1" else SRD_WS
    xstr = 128 if kern == "k1" else 262144
    for t in range(3):
        out.append(f"s_add_u32 m0, s{S_XB}, {slot*SLOT + t*1024}")
        out.append(f"s_mov_b32 s{S_T0}, {ch*xstr}")
        out.append(f"buffer_load_dwordx4 v{V_XA+t}, s[{xs}:{xs+3}], s{S_T0} offen lds")
    for t in range(2):
        out.append(f"s_add_u32 m0, s{S_WB}, {slot*SLOT + t*1024}")
        out.append(f"s_mul_i32 s{S_T1}, s{S_WSTR}, {ch}")
        out.append(f"buffer_load_dwordx4 v{V_WA+t}, s[{SRD_W}:{SRD_W+3}], s{S_T1} offen lds")
    return out

def gemm_read_addrs(a, kern, var):
    a("v_and_b32 v22, 15, v1")
    a("v_lshrrev_b32 v23, 4, v1")
    a(f"s_and_b32 s{S_T0}, s{S_WAVE}, 1")
    a(f"s_lshr_b32 s{S_T1}, s{S_WAVE}, 1")
    if kern == "k1":
        a(f"s_mul_i32 s{S_T2}, s{S_T0}, {48*128}")
        a("v_lshrrev_b32 v21, 1, v22")
        a("v_xor_b32 v21, v21, v23")
        a(f"v_lshl_add_u32 v20, v22, 7, s{S_T2}")
        a(f"v_lshl_add_u32 v{V_XR}, v21, 4, v20")
        a(f"v_xor_b32 v{V_XR+1}, 64, v{V_XR}")
        for u in range(2): a(f"v_add_u32 v{V_XR+2+u}, {3*SLOT}, v{V_XR+u}")
    else:
        a(f"s_mul_i32 s{S_T2}, s{S_T0}, 3")
        a("v_and_b32 v21, 1, v23")
        a("v_mul_u32_u24 v20, 1536, v23")
        a("v_lshl_add_u32 v20, v22, 3, v20")
        for mt in range(3):
            a(f"s_add_u32 s{S_SP}, s{S_T2}, {mt}")
            a(f"v_xor_b32 v19, s{S_SP}, v21")
            a(f"v_lshl_add_u32 v{V_XR+mt}, v19, 7, v20")
            a(f"v_add_u32 v{V_XR+3+mt}, {3*SLOT}, v{V_XR+mt}")
    a("v_lshrrev_b32 v21, 2, v22")
    a("v_lshl_add_u32 v21, v23, 3, v21")
    a("v_and_b32 v20, 3, v22")
    a("v_lshlrev_b32 v20, 3, v20")
    if var in ("Q", "O"):
        a("v_lshl_add_u32 v20, v21, 7, v20")
        a("v_lshrrev_b32 v21, 3, v22")
        a("v_and_b32 v19, 1, v23")
        a("v_lshl_or_b32 v21, v19, 1, v21")
        a(f"s_lshl_b32 s{S_T2}, s{S_T1}, 1")
        for t in range(2):
            a(f"s_add_u32 s{S_SP}, s{S_T2}, {t}")
            a(f"v_xor_b32 v19, s{S_SP}, v21")
            a("v_lshl_add_u32 v19, v19, 5, v20")
            a(f"v_add_u32 v{V_WR+t}, 12288, v19")
    else:
        a("v_mul_u32_u24 v21, 40, v21")
        a("v_add_u32 v20, v20, v21")
        base = 12288 + (4096 if var == "V" else 0)
        for t in range(2): a(f"v_add_u32 v{V_WR+t}, {base + 32*t}, v20")
    for t in range(2): a(f"v_add_u32 v{V_WR+2+t}, {3*SLOT}, v{V_WR+t}")
    a(f"s_lshl_b32 s{S_T2}, s{S_WAVE}, 2")
    a(f"s_add_u32 s{S_T2}, s{S_T2}, {G_FLG}")
    a(f"v_mov_b32 v{V_FW}, s{S_T2}")
    a(f"v_mov_b32 v{V_FR}, {G_FLG}")
    for i in range(24): a(f"v_mov_b32 v{V_ACC+i}, 0")

def frag(buf, u, what, i):
    b = V_F + 40 * buf + 20 * u
    return b + 4 * i if what == "x" else b + 12 + 4 * i

def gemm_reads(kern, var, ch):
    out = []
    slot = ch % 6; hi = slot >= 3; so = (slot % 3) * SLOT; buf = ch & 1
    for u in range(2):
        for t in range(2):
            for rho in range(2):
                off = so + ((4096 * u + 512 * rho) if var in ("Q", "O") else (1280 * u + 160 * rho))
                d = frag(buf, u, "w", t) + 2 * rho
                out.append(f"ds_read_b64_tr_b16 v[{d}:{d+1}], v{V_WR + t + 2*hi} offset:{off}")
        for mt in range(3):
            d = frag(buf, u, "x", mt)
            if kern == "k1":
                out.append(f"ds_read_b128 v[{d}:{d+3}], v{V_XR + u + 2*hi} offset:{so + 2048*mt}")
            else:
                for rho in range(2):
                    out.append(f"ds_read_b64 v[{d+2*rho}:{d+2*rho+1}], v{V_XR + mt + 3*hi} offset:{so + 6144*u + 768*rho}")
    return out

def gemm_mfma(var, ch, u):
    out = []
    buf = ch & 1
    for t in range(2):
        for mt in range(3):
            acc = V_ACC + 4 * (2 * mt + t)
            x = frag(buf, u, "x", mt); w = frag(buf, u, "w", t)
            A, B = (x, w) if var == "V" else (w, x)
            out.append(f"v_mfma_f32_16x16x32_bf16 v[{acc}:{acc+3}], v[{A}:{A+3}], v[{B}:{B+3}], v[{acc}:{acc+3}]")
    return out

def publish(a, val):
    a(f"v_mov_b32 v{V_FV}, {val}")
    a(f"ds_write_b32 v{V_FW}, v{V_FV}")
    a(f"ds_read_b128 v[{V_FD}:{V_FD+3}], v{V_FR}")

def spin(a, val):
    chk, ok = a.newlabel("Lchk"), a.newlabel("Lok")
    a(f"s_mov_b32 s{S_SP}, {CFG['spinmax']}")
    a.label(chk)
    a("s_waitcnt lgkmcnt(0)")
    a(f"v_min3_u32 v{V_T}, v{V_FD}, v{V_FD+1}, v{V_FD+2}")
    a(f"v_min_u32 v{V_T}, v{V_T}, v{V_FD+3}")
    a(f"s_sub_u32 s{S_SP}, s{S_SP}, 1")
    a(f"v_readfirstlane_b32 s{S_T2}, v{V_T}")
    a(f"s_cbranch_scc1 {ok}")
    a(f"s_cmp_ge_u32 s{S_T2}, {val}")
    a(f"s_cbranch_scc1 {ok}")
    a(f"ds_read_b128 v[{V_FD}:{V_FD+3}], v{V_FR}")
    a(f"s_branch {chk}")
    a.label(ok)

def gemm_first_dma(a, kern):
    for ch in range(6):
        for l in gemm_dma(a, kern, ch): a(l)

def gemm_main(a, kern, var):
    gemm_read_addrs(a, kern, var)
    a("s_waitcnt vmcnt(25)")
    publish(a, 1)
    spin(a, 1)
    for l in gemm_reads(kern, var, 0): a(l)
    for i in range(10):
        if i < 9:
            n = 5 * (min(9, i + 5) - (i + 1))
            a(f"s_waitcnt vmcnt({n}) lgkmcnt(0)")
            publish(a, i + 2)
            for l in gemm_mfma(var, i, 0): a(l)
            spin(a, i + 2)
            rd = gemm_reads(kern, var, i + 1)
            mf = gemm_mfma(var, i, 1)
            for l in interleave(rd, mf): a(l)
            if i + 6 <= 9:
                for l in gemm_dma(a, kern, i + 6): a(l)
        else:
            a("s_waitcnt lgkmcnt(0)")
            for u in range(2):
                for l in gemm_mfma(var, i, u): a(l)

def tile_index(a):
    a(f"s_and_b32 s{S_T0}, s{S_WAVE}, 1")
    a(f"s_mul_i32 s{S_T0}, s{S_T0}, 3")
    a(f"s_mul_i32 s{S_T2}, s{S_RB}, 6")
    a(f"s_add_u32 s{S_T2}, s{S_T2}, s{S_T0}")

def epi_q(a, endlbl):
    wt = CFG["wt"]
    tile_index(a)
    a("v_and_b32 v22, 15, v1")
    a("v_lshrrev_b32 v23, 4, v1")
    a("v_lshlrev_b32 v23, 14, v23")
    a("v_lshl_add_u32 v2, v22, 3, v23")
    a(f"s_lshr_b32 s{S_T1}, s{S_WAVE}, 1")
    a(f"s_lshl_b32 s{S_T1}, s{S_T1}, 3")
    a(f"s_lshl_b32 s{S_T0}, s{S_G}, 4")
    a(f"s_add_u32 s{S_T1}, s{S_T1}, s{S_T0}")
    a(f"s_lshl_b32 s{S_T1}, s{S_T1}, 14")
    a(f"s_lshl_b32 s{S_T0}, s{S_T2}, 7")
    a(f"s_add_u32 s{S_T1}, s{S_T1}, s{S_T0}")
    a(f"s_add_u32 s{S_T1}, s{S_T1}, {QF}")
    a(f"s_mov_b32 s{S_SP}, {f32(math.log2(math.e) / math.sqrt(20.0))}")
    a(f"s_add_u32 s{S_T0}, s{S_T1}, 65536")
    a.nop(2)
    for mt in range(3):
        a(f"s_add_u32 s53, s{S_T2}, {mt}")
        a("s_cmp_ge_u32 s53, 128")
        a(f"s_cbranch_scc1 {endlbl}")
        for t in range(2):
            acc = V_ACC + 4 * (2 * mt + t)
            for r in range(4): a(f"v_mul_f32 v{acc+r}, s{S_SP}, v{acc+r}")
            d = 4 + 2 * (2 * mt + t)
            a(f"v_cvt_pk_bf16_f32 v{d}, v{acc}, v{acc+1}")
            a(f"v_cvt_pk_bf16_f32 v{d+1}, v{acc+2}, v{acc+3}")
            a(f"buffer_store_dwordx2 v[{d}:{d+1}], v2, s[{SRD_WS}:{SRD_WS+3}], s{S_T0 if t else S_T1} offen offset:{128*mt} {wt}")

def epi_k(a, endlbl):
    wt = CFG["wt"]
    tile_index(a)
    a("v_and_b32 v22, 15, v1")
    a("v_lshrrev_b32 v23, 4, v1")
    a("v_lshrrev_b32 v21, 1, v23")
    a("v_lshlrev_b32 v21, 9, v21")
    a("v_lshl_add_u32 v21, v22, 4, v21")
    a("v_and_b32 v23, 1, v23")
    a("v_lshl_add_u32 v2, v23, 3, v21")
    a("v_lshlrev_b32 v3, 3, v22")
    a.nop(2)
    for mt in range(3):
        a(f"s_add_u32 s53, s{S_T2}, {mt}")
        a("s_cmp_ge_u32 s53, 128")
        a(f"s_cbranch_scc1 {endlbl}")
        a("s_lshr_b32 s54, s53, 2")
        a("s_mul_i32 s54, s54, 2560")
        a(f"s_add_u32 s54, s54, {KB}")
        a("s_bfe_u32 s55, s53, 0x10001")
        a("s_and_b32 s56, s53, 1")
        a("s_lshl_b32 s57, s55, 10")
        a("s_lshl_b32 s58, s56, 8")
        a("s_add_u32 s57, s57, s58")
        a("s_add_u32 s57, s57, s54")
        a("s_lshl_b32 s55, s55, 8")
        a("s_lshl_b32 s56, s56, 7")
        a("s_add_u32 s55, s55, s56")
        a("s_add_u32 s55, s55, s54")
        for t in range(2):
            acc = V_ACC + 4 * (2 * mt + t)
            d = 4 + 2 * (2 * mt + t)
            a(f"v_cvt_pk_bf16_f32 v{d}, v{acc}, v{acc+1}")
            a(f"v_cvt_pk_bf16_f32 v{d+1}, v{acc+2}, v{acc+3}")
            if t == 0:
                a(f"buffer_store_dwordx2 v[{d}:{d+1}], v2, s[{SRD_WS}:{SRD_WS+3}], s57 offen {wt}")
            else:
                a("s_mov_b64 exec, 0xffff")
                a(f"buffer_store_dwordx2 v[{d}:{d+1}], v3, s[{SRD_WS}:{SRD_WS+3}], s55 offen offset:2048 {wt}")
                a("s_mov_b64 exec, -1")

def epi_v(a, endlbl):
    wt = CFG["wt"]
    tile_index(a)
    a("v_and_b32 v22, 15, v1")
    a("v_lshrrev_b32 v23, 4, v1")
    a("v_and_b32 v21, 1, v23")
    a("v_mul_u32_u24 v21, 336, v21")
    a("v_lshl_add_u32 v21, v22, 4, v21")
    a("v_lshrrev_b32 v23, 1, v23")
    a("v_lshl_add_u32 v2, v23, 3, v21")
    a("s_mov_b32 s56, 0x00100010")
    a("s_mov_b32 s57, 0x00100010")
    a("s_mov_b32 s58, 0x001f001f")
    a("s_mov_b32 s59, 0x001f001f")
    for mt in range(3):
        a(f"s_add_u32 s53, s{S_T2}, {mt}")
        a("s_cmp_ge_u32 s53, 128")
        a(f"s_cbranch_scc1 {endlbl}")
        a("s_mul_i32 s54, s53, 672")
        a(f"s_add_u32 s54, s54, {VB + 5*672}")
        for t in range(2):
            acc = V_ACC + 4 * (2 * mt + t)
            d = 4 + 2 * (2 * mt + t)
            a(f"v_cvt_pk_bf16_f32 v{d}, v{acc}, v{acc+1}")
            a(f"v_cvt_pk_bf16_f32 v{d+1}, v{acc+2}, v{acc+3}")
            if t == 0:
                a(f"buffer_store_dwordx2 v[{d}:{d+1}], v2, s[{SRD_WS}:{SRD_WS+3}], s54 offen {wt}")
            else:
                a("s_mov_b64 exec, s[56:57]")
                a(f"v_mov_b32 v{d}, 0x3f803f80")
                a(f"v_mov_b32 v{d+1}, 0x3f803f80")
                a("s_mov_b64 exec, s[58:59]")
                a(f"buffer_store_dwordx2 v[{d}:{d+1}], v2, s[{SRD_WS}:{SRD_WS+3}], s54 offen offset:256 {wt}")
                a("s_mov_b64 exec, -1")
```

```python
from gemm import *

def cmul_pk(tre, tim, c, s, ore, oim, conj=False):
    P = lambda r: f"v[{r}:{r+1}]"
    n1 = " neg_lo:[0,1,0] neg_hi:[0,1,0]"
    return [
        f"v_pk_mul_f32 {P(ore)}, {P(tre)}, {P(c)}",
        f"v_pk_mul_f32 {P(oim)}, {P(tim)}, {P(c)}",
        f"v_pk_fma_f32 {P(ore)}, {P(tim)}, {P(s)}, {P(ore)}" + (n1 if conj else ""),
        f"v_pk_fma_f32 {P(oim)}, {P(tre)}, {P(s)}, {P(oim)}" + ("" if conj else n1),
    ]

def role_p1(a):
    wt = CFG["wt"]
    S_RQ, S_ST, S_A, S_B = 44, 45, 46, 47
    VA = 2
    V_RD, V_SA, V_N, V_H, V_A0, V_T0, V_T1, V_T2 = 7, 8, 9, 10, 11, 12, 13, 14
    V_CB, V_SB, V_TC, V_TS, V_A2 = 16, 24, 32, 44, 56
    V_A1 = 68
    V_B2 = 100
    V_TM = 124
    V_T = 128
    srd(a, SRD_X, S_BX, NX)
    a(f"s_lshl_b32 s{S_RQ}, s{S_L}, 1")
    a(f"s_add_u32 s{S_RQ}, s{S_RQ}, s{S_WAVE}")
    a(f"s_sub_u32 s{S_RQ}, s{S_RQ}, 4")
    a(f"s_sub_u32 s{S_ST}, s{S_WAVE}, 4")
    a(f"s_mul_i32 s{S_ST}, s{S_ST}, 5120")
    a(f"s_add_u32 s{S_ST}, s{S_ST}, {G_STAGE}")
    a(f"s_lshr_b32 s{S_A}, s{S_RQ}, 5")
    a(f"s_lshl_b32 s{S_A}, s{S_A}, 7")
    a(f"s_and_b32 s{S_B}, s{S_RQ}, 31")
    a(f"s_add_u32 s{S_A}, s{S_A}, s{S_B}")
    a(f"s_mul_i32 s{S_A}, s{S_A}, 1280")
    for e in range(320): assert (e * 820) >> 16 == e // 80
    for t in range(5):
        a(f"v_add_u32 v{V_T0}, {64*t}, v1")
        a(f"v_mul_u32_u24 v{V_T1}, 820, v{V_T0}")
        a(f"v_lshrrev_b32 v{V_T1}, 16, v{V_T1}")
        a(f"v_mul_u32_u24 v{V_T1}, 39680, v{V_T1}")
        a(f"s_add_u32 m0, s{S_ST}, {1024*t}")
        a(f"v_lshl_add_u32 v{VA+t}, v{V_T0}, 4, v{V_T1}")
        a(f"buffer_load_dwordx4 v{VA+t}, s[{SRD_X}:{SRD_X+3}], s{S_A} offen lds")
    a(f"v_and_b32 v{V_N}, 31, v1")
    a(f"v_lshrrev_b32 v{V_H}, 5, v1")
    a(f"v_cvt_f32_u32 v{V_T0}, v{V_N}")
    a(f"v_cvt_f32_u32 v{V_T1}, v{V_H}")
    a(f"v_mul_f32 v{V_A0}, {f32(1/32)}, v{V_T0}")
    a(f"v_mul_f32 v{V_T2}, {f32(8.0)}, v{V_T1}")
    a(f"v_mul_f32 v{V_T2}, v{V_T2}, v{V_A0}")
    tm = V_T
    for u in range(2):
        for j in range(8):
            a(f"v_fmamk_f32 v{tm+32}, v{V_A0}, {f32(16*u+j)}, v{V_T2}")
            sincos_angles(a, tm + j, tm + 8 + j, tm + 32, tm + 33)
        a("s_nop 0")
        for p in range(4):
            a(f"v_cvt_pk_bf16_f32 v{V_CB+4*u+p}, v{tm+2*p}, v{tm+2*p+1}")
            a(f"v_cvt_pk_bf16_f32 v{V_SB+4*u+p}, -v{tm+8+2*p}, -v{tm+8+2*p+1}")
    a(f"v_mul_f32 v{V_A0}, {f32(1/640)}, v{V_T0}")
    a(f"v_mul_f32 v{V_T2}, 4.0, v{V_T1}")
    a(f"v_mul_f32 v{V_T2}, v{V_T2}, v{V_A0}")
    for r in range(12):
        a(f"v_fmamk_f32 v{tm+32}, v{V_A0}, {f32(8*(r>>2) + (r&3))}, v{V_T2}")
        a(f"v_cos_f32 v{V_TC+r}, v{tm+32}")
        a(f"v_sin_f32 v{V_TS+r}, v{tm+32}")
    a(f"v_lshrrev_b32 v{V_A0}, 1, v{V_N}")
    a(f"v_cvt_f32_u32 v{V_A0}, v{V_A0}")
    a(f"v_mul_f32 v{V_A0}, {f32(1/20)}, v{V_A0}")
    a(f"v_and_b32 v{V_T0}, 1, v{V_N}")
    a(f"v_cvt_f32_u32 v{V_T0}, v{V_T0}")
    a(f"v_mul_f32 v{V_T2}, 4.0, v{V_T1}")
    a(f"v_mul_f32 v{V_T2}, v{V_T2}, v{V_A0}")
    a(f"v_fmac_f32 v{V_T2}, {f32(0.25)}, v{V_T0}")
    for r in range(12):
        a(f"v_fmamk_f32 v{tm+32}, v{V_A0}, {f32(8*(r>>2) + (r&3))}, v{V_T2}")
        sincos_angles(a, tm + 2 * r, tm + 2 * r + 1, tm + 32, tm + 33)
    a("s_nop 0")
    for r in range(12): a(f"v_cvt_pk_bf16_f32 v{V_A2+r}, v{tm+2*r}, v{tm+2*r+1}")
    a("s_mov_b32 exec_lo, 0")
    for r in range(8, 12): a(f"v_mov_b32 v{V_A2+r}, 0")
    a("s_mov_b32 exec_lo, -1")
    a(f"v_and_b32 v{V_T0}, 15, v1")
    a(f"v_lshrrev_b32 v{V_T1}, 2, v{V_T0}")
    a(f"v_lshl_add_u32 v{V_T1}, v{V_H}, 3, v{V_T1}")
    a(f"v_mul_u32_u24 v{V_T1}, 40, v{V_T1}")
    a(f"v_and_b32 v{V_T0}, 3, v1")
    a(f"v_lshlrev_b32 v{V_T0}, 3, v{V_T0}")
    a(f"v_and_b32 v{V_T2}, 16, v1")
    a(f"v_cmp_ne_u32 vcc, 0, v{V_T2}")
    a(f"v_mov_b32 v{V_T2}, 32")
    a("s_nop 0")
    a(f"v_cndmask_b32 v{V_T0}, v{V_T0}, v{V_T2}, vcc")
    a(f"v_add3_u32 v{V_RD}, v{V_T0}, v{V_T1}, s{S_ST}")
    a(f"v_lshlrev_b32 v{V_T0}, 4, v{V_N}")
    a(f"v_lshl_add_u32 v{V_SA}, v{V_H}, 10, v{V_T0}")
    a(f"s_mul_i32 s{S_A}, s{S_RQ}, {PITCH}")
    a(f"s_add_u32 s{S_A}, s{S_A}, {X1Q}")
    a("s_waitcnt vmcnt(0)")
    for i in range(4):
        for u in range(2):
            for rho in range(2):
                d = V_A1 + 8 * i + 4 * u + 2 * rho
                a(f"ds_read_b64_tr_b16 v[{d}:{d+1}], v{V_RD} offset:{1280*i + 640*u + 160*rho}")
    M = "v_mfma_f32_32x32x16_bf16"
    def S1(i):
        o = []
        tr, ti = V_T + 32 * i, V_T + 32 * i + 16
        for u in range(2):
            A = V_A1 + 8 * i + 4 * u
            o.append(f"{M} v[{tr}:{tr+15}], v[{A}:{A+3}], v[{V_CB+4*u}:{V_CB+4*u+3}], " + ("0" if u == 0 else f"v[{tr}:{tr+15}]"))
            o.append(f"{M} v[{ti}:{ti+15}], v[{A}:{A+3}], v[{V_SB+4*u}:{V_SB+4*u+3}], " + ("0" if u == 0 else f"v[{ti}:{ti+15}]"))
        return o
    def TW(i):
        o = []
        tr, ti = V_T + 32 * i, V_T + 32 * i + 16
        b2 = V_B2 + 12 * (i & 1)
        for p in range(6):
            o += cmul_pk(tr + 2 * p, ti + 2 * p, V_TC + 2 * p, V_TS + 2 * p, V_TM, V_TM + 2)
            o.append(f"v_cvt_pk_bf16_f32 v{b2+2*p}, v{V_TM}, v{V_TM+2}")
            o.append(f"v_cvt_pk_bf16_f32 v{b2+2*p+1}, v{V_TM+1}, v{V_TM+3}")
        return o
    def S2(i):
        tr = V_T + 32 * i; b2 = V_B2 + 12 * (i & 1)
        return [f"{M} v[{tr}:{tr+15}], v[{V_A2+4*v}:{V_A2+4*v+3}], v[{b2+4*v}:{b2+4*v+3}], " + ("0" if v == 0 else f"v[{tr}:{tr+15}]") for v in range(3)]
    def OUT(i):
        tr = V_T + 32 * i
        return [f"v_cvt_pk_bf16_f32 v{V_A1+4*p+i}, v{tr+2*p}, v{tr+2*p+1}" for p in range(6)]
    a("s_waitcnt lgkmcnt(8)")
    for l in S1(0) + S1(1): a(l)
    a("s_waitcnt lgkmcnt(0)")
    a.nop(6)
    for l in interleave_front(TW(0), S1(2)): a(l)
    for l in interleave_front(TW(1), S1(3) + S2(0)): a(l)
    a.nop(2)
    for l in interleave_front(TW(2), S2(1)): a(l)
    a.nop(2)
    for l in interleave_front(TW(3) + OUT(0), S2(2)): a(l)
    for l in S2(3) + OUT(1) + OUT(2): a(l)
    for l in OUT(3): a(l)
    for p in range(6):
        off = 16 * 32 * (4 * (p >> 1) + (p & 1))
        if p == 4:
            a("s_mov_b32 exec_hi, 1")
        if p == 5:
            a("s_mov_b32 exec_hi, 0")
        so = S_A
        if off >= 4096:
            a(f"s_add_u32 s{S_B}, s{S_A}, 4096"); so = S_B; off -= 4096
        a(f"buffer_store_dwordx4 v[{V_A1+4*p}:{V_A1+4*p+3}], v{V_SA}, s[{SRD_WS}:{SRD_WS+3}], s{so} offen offset:{off} {wt}")

def role_w(a, endlbl):
    wt = CFG["wt"]
    S_PC, S_R = 44, 48
    srd(a, SRD_X, S_WR, NWF)
    srd(a, SRD_W, S_WI, NWF)
    a(f"s_lshl_b32 s{S_PC}, s{S_L}, 1")
    a(f"s_add_u32 s{S_PC}, s{S_PC}, s{S_WAVE}")
    a(f"s_sub_u32 s{S_PC}, s{S_PC}, 6")
    a(f"s_lshr_b32 s45, s{S_PC}, 6")
    a("s_lshl_b32 s45, s45, 8")
    a(f"s_and_b32 s46, s{S_PC}, 63")
    a("s_add_u32 s45, s45, s46")
    a(f"s_mul_i32 s{S_R}, s45, 642")
    for i in range(1, 4): a(f"s_add_u32 s{S_R+i}, s{S_R}, {64*642*i}")
    a("v_lshlrev_b32 v2, 1, v1")
    a("v_lshlrev_b32 v3, 4, v1")
    for G in range(6):
        if G == 5: a("s_mov_b64 exec, 1")
        for i in range(4):
            a(f"buffer_load_ushort v{8+4*G+i}, v2, s[{SRD_X}:{SRD_X+3}], s{S_R+i} offen offset:{128*G}")
            a(f"buffer_load_short_d16_hi v{32+4*G+i}, v2, s[{SRD_W}:{SRD_W+3}], s{S_R+i} offen offset:{128*G}")
    a("s_mov_b64 exec, -1")
    skip, l32, ltw, lgo = a.newlabel("Lnotab"), a.newlabel("Lf32"), a.newlabel("Ltw"), a.newlabel("Lgo")
    a(f"s_cmp_ge_u32 s{S_PC}, 56")
    a(f"s_cbranch_scc1 {skip}")
    a(f"s_cmp_ge_u32 s{S_PC}, 40")
    a(f"s_cbranch_scc1 {ltw}")
    a(f"s_cmp_ge_u32 s{S_PC}, 32")
    a(f"s_cbranch_scc1 {l32}")
    a(f"s_lshr_b32 s52, s{S_PC}, 4")
    a(f"s_bfe_u32 s53, s{S_PC}, 0x10003")
    a(f"s_and_b32 s54, s{S_PC}, 7")
    a(f"s_mov_b32 s55, {f32(1/64)}")
    a(f"s_branch {lgo}")
    a.label(l32)
    a("s_mov_b32 s52, 0")
    a(f"s_bfe_u32 s53, s{S_PC}, 0x10002")
    a(f"s_and_b32 s54, s{S_PC}, 3")
    a(f"s_mov_b32 s55, {f32(1/32)}")
    a(f"s_branch {lgo}")
    a.label(ltw)
    a(f"s_sub_u32 s54, s{S_PC}, 40")
    a("s_lshr_b32 s52, s54, 3")
    a("s_bfe_u32 s53, s54, 0x10002")
    a("s_mul_i32 s53, s53, 3")
    a("s_and_b32 s54, s54, 3")
    a(f"s_mov_b32 s55, {f32(1/2048)}")
    a.label(lgo)
    a("s_lshl_b32 s52, s52, 5")
    a("s_lshl_b32 s54, s54, 3")
    a("v_and_b32 v60, 31, v1")
    a("v_add_u32 v60, s52, v60")
    a("v_lshrrev_b32 v61, 5, v1")
    a("v_lshl_add_u32 v61, v61, 2, s54")
    a("v_cvt_f32_u32 v60, v60")
    a("v_cvt_f32_u32 v61, v61")
    a("v_cvt_f32_u32 v62, s53")
    a("v_mul_f32 v60, s55, v60")
    a(f"v_mul_f32 v62, {f32(0.25)}, v62")
    a("v_fmac_f32 v62, v60, v61")
    for r in range(4):
        sincos_angles(a, 64 + r, 68 + r, 62, 63)
        a("v_add_f32 v62, v62, v60")
    nocvt = a.newlabel("Lnocvt")
    a(f"s_cmp_ge_u32 s{S_PC}, 40")
    a(f"s_cbranch_scc1 {nocvt}")
    for r in range(4): a(f"v_cvt_pk_bf16_f32 v{64+r}, v{64+r}, v{68+r}")
    a.label(nocvt)
    a(f"s_lshl_b32 s52, s{S_PC}, 10")
    a(f"s_add_u32 s52, s52, {TAB}")
    a(f"buffer_store_dwordx4 v[64:67], v3, s[{SRD_WS}:{SRD_WS+3}], s52 offen {wt}")
    a.label(skip)
    a(f"s_mul_i32 s45, s{S_PC}, {PITCH}")
    a(f"s_add_u32 s45, s45, {WQ}")
    a("s_add_u32 s46, s45, 4096")
    a("s_waitcnt vmcnt(0)")
    for G in range(6):
        if G == 5: a("s_mov_b64 exec, 1")
        for i in range(4): a(f"v_or_b32 v{8+4*G+i}, v{8+4*G+i}, v{32+4*G+i}")
        a(f"buffer_store_dwordx4 v[{8+4*G}:{11+4*G}], v3, s[{SRD_WS}:{SRD_WS+3}], s{45 + (G >> 2)} offen offset:{1024*(G&3)} {wt}")

def k1(a, name="proj_kernel"):
    end = name + "_end"
    kernel_head(a, name)
    prologue(a, end, G_FLG)
    lp1, lw, lkv, lv = (a.newlabel(x) for x in ("Lp1", "Lw", "Lkv", "Lv"))
    a(f"s_cmp_ge_u32 s{S_WAVE}, 6")
    a(f"s_cbranch_scc1 {lw}")
    a(f"s_cmp_ge_u32 s{S_WAVE}, 4")
    a(f"s_cbranch_scc1 {lp1}")
    gemm_setup(a, "k1", 11, 242, end)
    a(f"s_cmp_eq_u32 s{S_G}, 10")
    a(f"s_cbranch_scc1 {lkv}")
    gemm_w_dense(a, S_WQ)
    gemm_first_dma(a, "k1")
    gemm_main(a, "k1", "Q")
    epi_q(a, end)
    a("s_endpgm")
    a.label(lkv)
    gemm_w_kv(a)
    gemm_first_dma(a, "k1")
    a(f"s_cmp_ge_u32 s{S_WAVE}, 2")
    a(f"s_cbranch_scc1 {lv}")
    gemm_main(a, "k1", "K")
    epi_k(a, end)
    a("s_endpgm")
    a.label(lv)
    gemm_main(a, "k1", "V")
    epi_v(a, end)
    a("s_endpgm")
    a.label(lp1)
    role_p1(a)
    a("s_endpgm")
    a.label(lw)
    role_w(a, end)
    a.label(end)
    a("s_endpgm")
    return (name, 256, 512, G_LDS)
```

```python
from common import *
from k1 import cmul_pk

NS = 3
CH = 21504
L_TAB = NS * CH
L_X1 = L_TAB + 57344
L_EXC = L_X1 + 16384
A_LDS = L_EXC + 2 * 8704

V_K16A, V_K4A, V_VA, V_BK16, V_BK4, V_BV, V_G = 2, 3, 4, 5, 6, 7, 8
V_T0, V_T1, V_T2 = 9, 10, 11
Q16, Q4, K4, K16A, K16B, VF, P, O, SA, SB = 12, 16, 18, 20, 24, 28, 44, 60, 76, 108
BR = 140
WREG = 240
S_M, S_RS, S_WSL, S_SO, S_ST, S_LD, S_EV, S_XF = 44, 45, 46, 48, 51, 54, 55, 56
S_COL, S_W1, S_CS, S_A, S_B, S_HEAD, S_RT = 57, 58, 59, 60, 61, 62, 63
M16 = "v_mfma_f32_32x32x16_bf16"
EV_X, EV_W, EV_H1, EV_H2 = 1, 2, 3, 4

def R(b, n): return f"v[{b}:{b+n-1}]"

def chunk_dma(a):
    skip = a.newlabel("Lnodma")
    a(f"s_cmp_eq_u32 s{S_WAVE}, 7")
    a(f"s_cbranch_scc1 {skip}")
    a(f"s_add_u32 s{S_A}, s{S_WSL}, s{S_LD}")
    for t in range(3):
        a(f"s_add_u32 m0, s{S_A}, {1024*t}")
        a("s_nop 0")
        a(f"buffer_load_dwordx4 v{V_BK16}, s[{SRD_WS}:{SRD_WS+3}], s{S_SO+t} offen lds")
        a(f"s_add_u32 s{S_SO+t}, s{S_SO+t}, s{S_ST+t}")
    a.label(skip)
    a(f"s_add_u32 s{S_WSL}, s{S_WSL}, {CH}")
    a(f"s_cmp_ge_u32 s{S_WSL}, {NS*CH}")
    a(f"s_cselect_b32 s{S_WSL}, 0, s{S_WSL}")

def set_read_slot(a):
    a(f"v_add_u32 v{V_K16A}, s{S_RS}, v{V_BK16}")
    a(f"v_add_u32 v{V_K4A}, s{S_RS}, v{V_BK4}")
    a(f"v_add_u32 v{V_VA}, s{S_RS}, v{V_BV}")
    a(f"s_add_u32 s{S_RS}, s{S_RS}, {CH}")
    a(f"s_cmp_ge_u32 s{S_RS}, {NS*CH}")
    a(f"s_cselect_b32 s{S_RS}, 0, s{S_RS}")

def iteration(a, li, exp=True, qk=True, pv3=True, pv=True, ldk=True, ldv3=True, ldv=True, strict=False):
    X, Y = (SA, SB) if li % 2 == 0 else (SB, SA)
    def g(k):
        if not exp: return []
        o = [f"v_exp_f32 v{X+4*k+i}, v{X+4*k+i}" for i in range(4)]
        o += [f"v_cvt_pk_bf16_f32 v{P+2*k+i}, v{X+4*k+2*i}, v{X+4*k+2*i+1}" for i in range(2)]
        return o
    def PV(j): return f"{M16} {R(O,16)}, {R(VF+4*j,4)}, {R(P+4*j,4)}, {R(O,16)}"
    def LV(j, q): return f"ds_read_b128 {R(VF+4*j,4)}, v{V_VA} offset:{10240 + 672*q}"
    kb = 2560 * li
    slots = [
        (f"v_mfma_f32_32x32x4bf16_1k {R(Y,32)}, {R(K4,2)}, {R(Q4,2)}, 0" if qk else None, f"ds_read_b64 {R(K4,2)}, v{V_K4A} offset:{kb+2048}" if ldk else None),
        (None, None),
        (PV(3) if pv3 else None, LV(3, 4*li) if ldv3 else None),
        (f"{M16} {R(Y,16)}, {R(K16A,4)}, {R(Q16,4)}, {R(Y,16)}" if qk else None, f"ds_read_b128 {R(K16A,4)}, v{V_K16A} offset:{kb}" if ldk else None),
        (PV(0) if pv else None, LV(0, 4*li+1) if ldv else None),
        (f"{M16} {R(Y+16,16)}, {R(K16B,4)}, {R(Q16,4)}, {R(Y+16,16)}" if qk else None, f"ds_read_b128 {R(K16B,4)}, v{V_K16A} offset:{kb+1024}" if ldk else None),
        (PV(1) if pv else None, LV(1, 4*li+2) if ldv else None),
        (PV(2) if pv else None, LV(2, 4*li+3) if ldv else None),
    ]
    for k, (mf, ld) in enumerate(slots):
        if k == 0 and (qk or pv3): a("s_waitcnt lgkmcnt(0)" if strict else "s_waitcnt lgkmcnt(4)")
        if k == 4 and pv: a("s_waitcnt lgkmcnt(0)" if strict else "s_waitcnt lgkmcnt(3)")
        if k == 3 and qk and not exp: a.nop(17)
        if mf: a(mf)
        gg = g(k)
        for l in gg[:2]: a(l)
        if ld: a(ld)
        for l in gg[2:]: a(l)

def col_addr(a, base, mul_w, dst):
    a(f"s_lshl_b32 s{dst}, s{S_COL}, 4")
    a(f"s_mul_i32 s{S_B}, s{S_W1}, {mul_w}")
    a(f"s_add_u32 s{dst}, s{dst}, s{S_B}")
    a(f"s_add_u32 s{dst}, s{dst}, {base}")

def ev_x(a):
    col_addr(a, X1Q, 256 * PITCH, S_A)
    a(f"s_lshl_b32 s{S_B}, s{S_WAVE}, 12")
    a(f"s_add_u32 s{S_B}, s{S_B}, {L_X1}")
    for u in range(4):
        a(f"s_add_u32 m0, s{S_B}, {1024*u}")
        a("s_nop 0")
        a(f"buffer_load_dwordx4 v{V_G}, s[{SRD_WS}:{SRD_WS+3}], s{S_A} offen lds")
        a(f"s_add_u32 s{S_A}, s{S_A}, {64*PITCH}")

def ev_w(a):
    col_addr(a, WQ, 32 * PITCH, S_A)
    a(f"v_and_b32 v{V_T0}, 32, v1")
    a(f"v_add_u32 v{V_T0}, v{V_T0}, v1")
    a(f"v_mul_u32_u24 v{V_T0}, {PITCH}, v{V_T0}")
    for q in range(4):
        a(f"buffer_load_dwordx4 {R(WREG+4*q,4)}, v{V_T0}, s[{SRD_WS}:{SRD_WS+3}], s{S_A} offen")
        a(f"s_add_u32 s{S_A}, s{S_A}, {128*PITCH}")

def big_stage(a, data_addr, data_off, const_is_A):
    def rd(u):
        b = BR + 12 * u
        return [f"ds_read_b128 {R(b,4)}, v{data_addr} offset:{data_off(u)}",
                f"ds_read_b128 {R(b+4,4)}, v{V_T1} offset:{1024*u}",
                f"ds_read_b128 {R(b+8,4)}, v{V_T1} offset:{8192+1024*u}"]
    for u in range(4):
        for l in rd(u): a(l)
    for u in range(8):
        if u + 4 < 8:
            a("s_waitcnt lgkmcnt(9)")
        else:
            a(f"s_waitcnt lgkmcnt({3*(7-u)})")
        b = BR + 12 * u
        for o in range(2):
            acc = SB + 16 * o
            A, B = (b + 4 + 4 * o, b) if const_is_A else (b, b + 4 + 4 * o)
            a(f"{M16} {R(acc,16)}, {R(A,4)}, {R(B,4)}, " + ("0" if u == 0 else R(acc, 16)))
        if u + 4 < 8:
            for l in rd(u + 4): a(l)

def hook1(a):
    TC, TS, F32, B2, R2, TM = BR, BR + 16, BR + 32, BR + 64, BR + 80, P
    a(f"s_lshl_b32 s{S_A}, s{S_CS}, 13")
    a(f"s_add_u32 s{S_A}, s{S_A}, {L_X1}")
    a(f"v_add_u32 v{V_T0}, s{S_A}, v{V_BK16}")
    a(f"s_lshl_b32 s{S_B}, s{S_W1}, 14")
    a(f"s_add_u32 s{S_B}, s{S_B}, {L_TAB}")
    a(f"v_add_u32 v{V_T1}, s{S_B}, v{V_BK16}")
    big_stage(a, V_T0, lambda u: 1024 * u, False)
    a(f"s_lshl_b32 s{S_B}, s{S_W1}, 13")
    a(f"s_add_u32 s{S_B}, s{S_B}, {L_TAB + 40*1024}")
    a(f"v_add_u32 v{V_T0}, s{S_B}, v{V_BK16}")
    a(f"v_add_u32 v{V_T1}, {L_TAB + 32*1024}, v{V_BK16}")
    for q in range(4):
        a(f"ds_read_b128 {R(TC+4*q,4)}, v{V_T0} offset:{1024*q}")
        a(f"ds_read_b128 {R(TS+4*q,4)}, v{V_T0} offset:{4096+1024*q}")
    for j in range(8):
        a(f"ds_read_b128 {R(F32+4*j,4)}, v{V_T1} offset:{1024*j}")
    def twiddle():
        for p in range(8):
            t = TM + 4 * (p & 1)
            for l in cmul_pk(SB + 2*p, SB + 16 + 2*p, TC + 2*p, TS + 2*p, t, t + 2): a(l)
            a(f"v_cvt_pk_bf16_f32 v{B2+2*p}, v{t}, v{t+2}")
            a(f"v_cvt_pk_bf16_f32 v{B2+2*p+1}, v{t+1}, v{t+3}")
    def small_stage():
        for u in range(4):
            for o in range(2):
                acc = SB + 16 * o
                a(f"{M16} {R(acc,16)}, {R(F32+16*o+4*u,4)}, {R(B2+4*u,4)}, " + ("0" if u == 0 else R(acc, 16)))
    a("s_waitcnt lgkmcnt(8)")
    twiddle()
    a("s_waitcnt lgkmcnt(0)")
    a.nop(1)
    small_stage()
    WR_, WI_ = BR + 80, BR + 84
    half = a.newlabel("Lfull")
    UW = BR + 80
    a(f"s_cmp_eq_u32 s{S_COL}, 0")
    a(f"s_cselect_b32 s{S_A}, {f32(0.5)}, 1.0")
    a(f"s_cmp_eq_u32 s{S_COL}, 320")
    a(f"s_cselect_b32 s{S_A}, {f32(0.5)}, s{S_A}")
    for hb in range(2):
        for i in range(8):
            a(f"v_lshlrev_b32 v{UW+i}, 16, v{WREG+8*hb+i}")
            a(f"v_and_b32 v{UW+8+i}, 0xffff0000, v{WREG+8*hb+i}")
        sk = a.newlabel("Lnoscale")
        a(f"s_cmp_eq_u32 s{S_A}, 1.0")
        a(f"s_cbranch_scc1 {sk}")
        for i in range(16): a(f"v_mul_f32 v{UW+i}, s{S_A}, v{UW+i}")
        a.label(sk)
        for pp in range(4):
            p = 4 * hb + pp
            t = TM + 4 * (p & 1)
            for l in cmul_pk(SB + 2*p, SB + 16 + 2*p, UW + 2*pp, UW + 8 + 2*pp, t, t + 2, conj=True): a(l)
            a(f"v_cvt_pk_bf16_f32 v{B2+2*p}, v{t}, -v{t+2}")
            a(f"v_cvt_pk_bf16_f32 v{B2+2*p+1}, v{t+1}, -v{t+3}")
    a.nop(2)
    small_stage()
    a(f"s_mul_i32 s{S_A}, s{S_CS}, 8704")
    a(f"s_lshl_b32 s{S_B}, s{S_W1}, 7")
    a(f"s_add_u32 s{S_A}, s{S_A}, s{S_B}")
    a(f"s_add_u32 s{S_A}, s{S_A}, {L_EXC}")
    a(f"v_lshrrev_b32 v{V_T0}, 5, v1")
    a(f"v_mul_u32_u24 v{V_T0}, {4*272}, v{V_T0}")
    a(f"v_and_b32 v{V_T1}, 31, v1")
    a(f"v_lshl_add_u32 v{V_T0}, v{V_T1}, 2, v{V_T0}")
    a(f"v_add_u32 v{V_T0}, s{S_A}, v{V_T0}")
    a.nop(3)
    twiddle()
    for r in range(16):
        a(f"ds_write_b32 v{V_T0}, v{B2+r} offset:{272*(8*(r>>2) + (r&3))}")
    a("s_waitcnt lgkmcnt(0)")

def hook2(a):
    wt = CFG["wtz"]
    a(f"s_mul_i32 s{S_A}, s{S_CS}, 8704")
    a(f"s_add_u32 s{S_A}, s{S_A}, {L_EXC}")
    a(f"v_and_b32 v{V_T0}, 31, v1")
    a(f"v_mul_u32_u24 v{V_T0}, 272, v{V_T0}")
    a(f"v_lshrrev_b32 v{V_T1}, 5, v1")
    a(f"v_lshl_add_u32 v{V_T0}, v{V_T1}, 4, v{V_T0}")
    a(f"v_add_u32 v{V_T0}, s{S_A}, v{V_T0}")
    a(f"s_lshl_b32 s{S_B}, s{S_W1}, 14")
    a(f"s_add_u32 s{S_B}, s{S_B}, {L_TAB}")
    a(f"v_add_u32 v{V_T1}, s{S_B}, v{V_BK16}")
    big_stage(a, V_T0, lambda u: 32 * u, True)
    col_addr(a, ZQ, 256 * PITCH, S_A)
    a.nop(8)
    for q in range(4):
        for i in range(4):
            a(f"v_cvt_pk_bf16_f32 v{WREG+4*q+i}, v{SB+4*q+i}, -v{SB+16+4*q+i}")
        a(f"buffer_store_dwordx4 {R(WREG+4*q,4)}, v{V_G}, s[{SRD_WS}:{SRD_WS+3}], s{S_A} offen {wt}")
        a(f"s_add_u32 s{S_A}, s{S_A}, {64*PITCH}")
    a(f"s_mov_b32 s{S_XF}, 1")

def fallback(a, back):
    CM, QZ, MX = SB, K4, V_T2
    X8 = "v_mfma_f32_32x32x8_bf16"
    a(f"v_mov_b32 v{P}, v{Q4}")
    a(f"v_mov_b32 v{P+1}, v{Q4+1}")
    a("s_mov_b32 exec_lo, 0")
    a(f"v_mov_b32 v{Q4}, 0")
    a(f"v_mov_b32 v{Q4+1}, 0")
    a("s_mov_b32 exec_lo, -1")
    a(f"v_and_b32 v{V_K4A}, 31, v1")
    a(f"v_lshlrev_b32 v{V_K4A}, 3, v{V_K4A}")
    a(f"v_mov_b32 v{MX}, 0xff800000")
    def tile_addr():
        a(f"s_lshr_b32 s{S_A}, s{S_M}, 1")
        a(f"s_mul_i32 s{S_A}, s{S_A}, 2560")
        a(f"s_add_u32 s{S_A}, s{S_A}, {KB}")
        a(f"s_and_b32 s{S_B}, s{S_M}, 1")
        a(f"s_lshl_b32 s{S_SO}, s{S_B}, 10")
        a(f"s_add_u32 s{S_SO}, s{S_SO}, s{S_A}")
        a(f"s_lshl_b32 s{S_SO+1}, s{S_B}, 8")
        a(f"s_add_u32 s{S_SO+1}, s{S_SO+1}, s{S_A}")
        a(f"buffer_load_dwordx4 {R(K16A,4)}, v{V_BK16}, s[{SRD_WS}:{SRD_WS+3}], s{S_SO} offen")
        a(f"buffer_load_dwordx2 {R(K4,2)}, v{V_K4A}, s[{SRD_WS}:{SRD_WS+3}], s{S_SO+1} offen offset:2048")
    l1, l2 = a.newlabel("Lmax"), a.newlabel("Lsafe")
    a(f"s_mov_b32 s{S_M}, 0")
    a.label(l1)
    tile_addr()
    a("s_waitcnt vmcnt(0)")
    a(f"{M16} {R(SA,16)}, {R(K16A,4)}, {R(Q16,4)}, 0")
    a(f"{X8} {R(SA,16)}, {R(K4,2)}, {R(Q4,2)}, {R(SA,16)}")
    a.nop(12)
    for i in range(8): a(f"v_max3_f32 v{MX}, v{MX}, v{SA+2*i}, v{SA+2*i+1}")
    a(f"s_add_u32 s{S_M}, s{S_M}, 1")
    a(f"s_cmp_lt_u32 s{S_M}, 64")
    a(f"s_cbranch_scc1 {l1}")
    a(f"v_mov_b32 v{V_T0}, v{MX}")
    a.nop(2)
    a(f"v_permlane32_swap_b32 v{V_T0}, v{MX}")
    a.nop(2)
    a(f"v_max_f32 v{MX}, v{MX}, v{V_T0}")
    for i in range(16):
        a(f"v_sub_f32 v{CM+i}, 0, v{MX}")
        a(f"v_mov_b32 v{O+i}, 0")
    a(f"s_mov_b32 s{S_M}, 0")
    a.label(l2)
    tile_addr()
    a(f"s_mul_i32 s{S_A}, s{S_M}, 1344")
    a(f"s_add_u32 s{S_A}, s{S_A}, {VB + 5*672}")
    for j in range(2):
        a(f"buffer_load_dwordx4 {R(VF+4*j,4)}, v{V_BV}, s[{SRD_WS}:{SRD_WS+3}], s{S_A} offen offset:{672*j}")
    a("s_waitcnt vmcnt(0)")
    a(f"{M16} {R(SA,16)}, {R(K16A,4)}, {R(Q16,4)}, {R(CM,16)}")
    a(f"{X8} {R(SA,16)}, {R(K4,2)}, {R(Q4,2)}, {R(SA,16)}")
    a.nop(12)
    for i in range(16): a(f"v_exp_f32 v{SA+i}, v{SA+i}")
    a.nop(1)
    for i in range(8): a(f"v_cvt_pk_bf16_f32 v{P+i}, v{SA+2*i}, v{SA+2*i+1}")
    a.nop(2)
    for j in range(2): a(f"{M16} {R(O,16)}, {R(VF+4*j,4)}, {R(P+4*j,4)}, {R(O,16)}")
    a(f"s_add_u32 s{S_M}, s{S_M}, 1")
    a(f"s_cmp_lt_u32 s{S_M}, 64")
    a(f"s_cbranch_scc1 {l2}")
    a.nop(12)
    a(f"v_mov_b32 v{V_T0}, v{O+8}")
    a(f"v_mov_b32 v{V_T1}, v{O+8}")
    a.nop(2)
    a(f"v_permlane32_swap_b32 v{V_T0}, v{V_T1}")
    a.nop(2)
    a(f"s_branch {back}")

def k2(a, name="attn_kernel"):
    wt = CFG["wt"]
    end = name + "_end"
    kernel_head(a, name)
    prologue(a, end)
    a(f"v_lshlrev_b32 v{V_BK16}, 4, v1")
    a(f"s_mul_i32 s{S_LD}, s{S_WAVE}, 3072")
    for t in range(3):
        a(f"s_mul_i32 s{S_A}, s{S_WAVE}, 3")
        a(f"s_add_u32 s{S_A}, s{S_A}, {t}")
        a(f"s_lshl_b32 s{S_B}, s{S_A}, 10")
        a(f"s_cmp_ge_u32 s{S_A}, 10")
        a(f"s_cselect_b32 s{S_ST+t}, 512, 0")
        a(f"s_cselect_b32 s{S_SO+t}, {VB - 10240 - KB}, 0")
        a(f"s_add_u32 s{S_ST+t}, s{S_ST+t}, 10240")
        a(f"s_add_u32 s{S_B}, s{S_B}, {KB}")
        a(f"s_add_u32 s{S_SO+t}, s{S_SO+t}, s{S_B}")
    a(f"s_mov_b32 s{S_WSL}, 0")
    a(f"s_mov_b32 s{S_RS}, 0")
    chunk_dma(a)
    a(f"s_lshr_b32 s{S_RT}, s{S_L}, 2")
    a(f"s_and_b32 s{S_HEAD}, s{S_L}, 3")
    a(f"s_lshl_b32 s{S_HEAD}, s{S_HEAD}, 3")
    a(f"s_add_u32 s{S_HEAD}, s{S_HEAD}, s{S_WAVE}")
    a(f"s_mul_i32 s{S_HEAD}, s{S_HEAD}, {5*16384}")
    a(f"s_lshl_b32 s{S_RT}, s{S_RT}, 8")
    a(f"s_add_u32 s{S_HEAD}, s{S_HEAD}, s{S_RT}")
    a(f"v_and_b32 v{V_T0}, 31, v1")
    a(f"v_lshlrev_b32 v{V_T0}, 3, v{V_T0}")
    a(f"v_lshrrev_b32 v{V_T1}, 5, v1")
    a(f"v_lshl_add_u32 v{V_T1}, v{V_T1}, 15, v{V_T0}")
    a(f"s_add_u32 s{S_A}, s{S_HEAD}, {QF}")
    a(f"s_add_u32 s{S_B}, s{S_A}, 16384")
    a(f"s_add_u32 s{S_RT}, s{S_A}, 65536")
    a(f"buffer_load_dwordx2 {R(Q16,2)}, v{V_T1}, s[{SRD_WS}:{SRD_WS+3}], s{S_A} offen")
    a(f"buffer_load_dwordx2 {R(Q16+2,2)}, v{V_T1}, s[{SRD_WS}:{SRD_WS+3}], s{S_B} offen")
    a(f"buffer_load_dwordx2 {R(Q4,2)}, v{V_T0}, s[{SRD_WS}:{SRD_WS+3}], s{S_RT} offen")
    chunk_dma(a)
    a(f"v_lshlrev_b32 v{V_BK4}, 3, v1")
    a(f"v_and_b32 v{V_T0}, 31, v1")
    a(f"v_min_u32 v{V_T1}, 20, v{V_T0}")
    a(f"v_cmp_lt_u32 vcc, 27, v{V_T0}")
    a(f"v_mov_b32 v{V_T2}, 16")
    a(f"v_mul_u32_u24 v{V_G}, {PITCH}, v1")
    a(f"v_cndmask_b32 v{V_T1}, v{V_T1}, v{V_T2}, vcc")
    a(f"v_lshrrev_b32 v{V_T0}, 5, v1")
    a(f"v_mul_u32_u24 v{V_T0}, 336, v{V_T0}")
    a(f"v_lshl_add_u32 v{V_BV}, v{V_T1}, 4, v{V_T0}")
    for i in range(16): a(f"v_mov_b32 v{O+i}, 0")
    a(f"s_and_b32 s{S_W1}, s{S_WAVE}, 1")
    a(f"s_lshr_b32 s{S_CS}, s{S_WAVE}, 1")
    a(f"s_lshr_b32 s{S_A}, s{S_L}, 2")
    a(f"s_add_u32 s{S_A}, s{S_A}, 256")
    a(f"s_and_b32 s{S_B}, s{S_L}, 3")
    a(f"s_cmp_eq_u32 s{S_B}, 0")
    a(f"s_cselect_b32 s{S_A}, s{S_A}, 999")
    a(f"s_cmp_eq_u32 s{S_L}, 1")
    a(f"s_cselect_b32 s{S_A}, 320, s{S_A}")
    a(f"s_cmp_eq_u32 s{S_CS}, 0")
    a(f"s_cselect_b32 s{S_COL}, s{S_L}, s{S_A}")
    a(f"s_cmp_ge_u32 s{S_CS}, 2")
    a(f"s_cselect_b32 s{S_COL}, 999, s{S_COL}")
    a(f"s_cmp_le_u32 s{S_COL}, 320")
    a(f"s_cselect_b32 s{S_EV}, {(1<<EV_X)|(1<<EV_W)|(1<<EV_H1)|(1<<EV_H2) if CFG.get('fft', 1) else 0}, 0")
    a(f"s_mov_b32 s{S_XF}, 0")
    set_read_slot(a)
    w7 = a.newlabel("Lw7")
    a("s_waitcnt vmcnt(3)")
    a(f"s_cmp_lg_u32 s{S_WAVE}, 7")
    a(f"s_cbranch_scc1 {w7}")
    a("s_waitcnt vmcnt(0)")
    a.label(w7)
    a("s_barrier")
    iteration(a, 0, exp=False, qk=False, pv3=False, pv=False, ldv3=False, ldv=False)
    nt = a.newlabel("Lnotab")
    a(f"s_sub_u32 s{S_A}, s{S_WAVE}, 4")
    a(f"s_cmp_ge_u32 s{S_A}, 3")
    a(f"s_cbranch_scc1 {nt}")
    a(f"s_mul_i32 s{S_A}, s{S_A}, {19*1024}")
    a(f"s_min_u32 s{S_A}, s{S_A}, {37*1024}")
    a(f"s_add_u32 s{S_B}, s{S_A}, {TAB}")
    a(f"s_add_u32 s{S_A}, s{S_A}, {L_TAB}")
    lt = a.newlabel("Ltab")
    a(f"s_mov_b32 s{S_M}, 19")
    a.label(lt)
    a(f"s_mov_b32 m0, s{S_A}")
    a(f"s_add_u32 s{S_A}, s{S_A}, 1024")
    a(f"buffer_load_dwordx4 v{V_BK16}, s[{SRD_WS}:{SRD_WS+3}], s{S_B} offen lds")
    a(f"s_add_u32 s{S_B}, s{S_B}, 1024")
    a(f"s_sub_u32 s{S_M}, s{S_M}, 1")
    a(f"s_cmp_lg_u32 s{S_M}, 0")
    a(f"s_cbranch_scc1 {lt}")
    a.label(nt)
    chunk_dma(a)
    iteration(a, 1, exp=False, pv3=False, pv=False, ldv3=False, strict=True)
    a.nop(6)
    iteration(a, 2, pv3=False, strict=True)
    iteration(a, 3)
    loop, back, disp = a.newlabel("Lbody"), a.newlabel("Lback"), a.newlabel("Ldisp")
    a(f"s_mov_b32 s{S_M}, 1")
    a(".p2align 6")
    a.label(loop)
    def barrier():
        x = a.newlabel("Lx"); y = a.newlabel("Ly")
        set_read_slot(a)
        a(f"s_cmp_lg_u32 s{S_XF}, 0")
        a(f"s_cbranch_scc1 {x}")
        a("s_waitcnt vmcnt(3)")
        a.label(x)
        a("s_waitcnt vmcnt(7)")
        a(f"s_mov_b32 s{S_XF}, 0")
        a("s_barrier")
    barrier()
    a(f"s_bitcmp1_b32 s{S_EV}, s{S_M}")
    a(f"s_cbranch_scc1 {disp}")
    a.label(back)
    nd = a.newlabel("Lnd")
    a(f"s_cmp_ge_u32 s{S_M}, 7")
    a(f"s_cbranch_scc1 {nd}")
    chunk_dma(a)
    a.label(nd)
    for li in range(4): iteration(a, li)
    a(f"s_add_u32 s{S_M}, s{S_M}, 1")
    a(f"s_cmp_lt_u32 s{S_M}, 8")
    a(f"s_cbranch_scc1 {loop}")
    set_read_slot(a)
    a("s_waitcnt vmcnt(0)")
    a("s_barrier")
    iteration(a, 0, ldk=False, strict=True)
    iteration(a, 1, qk=False, ldk=False, ldv=False, strict=True)
    a("s_waitcnt lgkmcnt(0)")
    a("s_nop 0")
    a(f"{M16} {R(O,16)}, {R(VF+12,4)}, {R(P+12,4)}, {R(O,16)}")
    a(f"v_and_b32 v{V_T2}, 31, v1")
    a(f"v_lshlrev_b32 v{V_T2}, 3, v{V_T2}")
    a(f"v_lshrrev_b32 v{V_K16A}, 5, v1")
    a(f"v_lshl_add_u32 v{V_K16A}, v{V_K16A}, 14, v{V_T2}")
    a(f"s_add_u32 s{S_HEAD}, s{S_HEAD}, {OF}")
    a(f"s_add_u32 s{S_RT}, s{S_HEAD}, 32768")
    a(f"s_add_u32 s{S_LD}, s{S_HEAD}, 65536")
    a(f"s_mov_b32 s{S_A}, {f32(2.0**-24)}")
    a(f"s_mov_b32 s{S_B}, {f32(2.0**80)}")
    a(f"s_mov_b32 s{S_M}, 0x7f800000")
    a.nop(3)
    a(f"v_mov_b32 v{V_T0}, v{O+8}")
    a(f"v_mov_b32 v{V_T1}, v{O+8}")
    a(f"v_max3_f32 v{V_T2}, abs(v{O}), abs(v{O+1}), abs(v{O+2})")
    a(f"v_max3_f32 v{V_T2}, v{V_T2}, abs(v{O+3}), abs(v{O+4})")
    a(f"v_permlane32_swap_b32 v{V_T0}, v{V_T1}")
    a(f"v_max3_f32 v{V_T2}, v{V_T2}, abs(v{O+5}), abs(v{O+6})")
    a(f"v_max3_f32 v{V_T2}, v{V_T2}, abs(v{O+7}), abs(v{O+8})")
    a(f"v_max3_f32 v{V_T2}, v{V_T2}, abs(v{O+9}), abs(v{O+10})")
    a(f"v_max_f32_e64 v{V_T2}, v{V_T2}, abs(v{O+11})")
    a(f"v_cmp_le_f32 vcc, s{S_A}, v{V_T1}")
    a(f"v_cmp_ge_f32 s[64:65], s{S_B}, v{V_T1}")
    a(f"v_cmp_gt_f32 s[66:67], s{S_M}, v{V_T2}")
    fb, fin = a.newlabel("Lfb"), a.newlabel("Lfin")
    a("s_and_b64 vcc, vcc, s[64:65]")
    a("s_and_b64 vcc, vcc, s[66:67]")
    if CFG.get("force_fb"): a("s_mov_b64 vcc, 0")
    a("s_cmp_eq_u64 vcc, -1")
    a(f"s_cbranch_scc0 {fb}")
    a.label(fin)
    a(f"v_rcp_f32 v{V_T1}, v{V_T1}")
    a("s_nop 0")
    for q in range(3):
        for i in range(4): a(f"v_mul_f32 v{O+4*q+i}, v{O+4*q+i}, v{V_T1}")
        for i in range(2): a(f"v_cvt_pk_bf16_f32 v{P+2*q+i}, v{O+4*q+2*i}, v{O+4*q+2*i+1}")
        if q == 2: a("s_mov_b32 exec_hi, 0")
        a(f"buffer_store_dwordx2 {R(P+2*q,2)}, v{V_K16A}, s[{SRD_WS}:{SRD_WS+3}], s{[S_HEAD, S_RT, S_LD][q]} offen {wt}")
    a("s_endpgm")
    a.label(disp)
    lw, l1, l2 = a.newlabel("Levw"), a.newlabel("Lh1"), a.newlabel("Lh2")
    a(f"s_cmp_eq_u32 s{S_M}, {EV_W}")
    a(f"s_cbranch_scc1 {lw}")
    a(f"s_cmp_eq_u32 s{S_M}, {EV_H1}")
    a(f"s_cbranch_scc1 {l1}")
    a(f"s_cmp_eq_u32 s{S_M}, {EV_H2}")
    a(f"s_cbranch_scc1 {l2}")
    ev_x(a); a(f"s_branch {back}")
    a.label(lw); ev_w(a); a(f"s_branch {back}")
    a.label(l1); hook1(a); a(f"s_branch {back}")
    a.label(l2); hook2(a); a(f"s_branch {back}")
    a.label(fb); fallback(a, fin)
    a.label(end)
    a("s_endpgm")
    return (name, 256, 512, A_LDS)
```

```python
from gemm import *
from k1 import cmul_pk

def epi_o(a, endlbl):
    tile_index(a)
    srd(a, SRD_2, S_OUT, NOUT)
    a(f"s_lshl_b32 s{S_T0}, s{S_WAVE}, 12")
    a(f"s_add_u32 s{S_T0}, s{S_T0}, {4*SLOT}")
    a("v_and_b32 v22, 15, v1")
    a("v_lshrrev_b32 v23, 4, v1")
    a("v_mul_u32_u24 v22, 80, v22")
    a("v_lshl_add_u32 v22, v23, 3, v22")
    a(f"v_add_u32 v2, s{S_T0}, v22")
    a("v_lshrrev_b32 v22, 2, v1")
    a("v_and_b32 v23, 3, v1")
    a("v_lshlrev_b32 v23, 4, v23")
    a("v_mul_u32_u24 v21, 80, v22")
    a(f"v_add3_u32 v3, v21, v23, s{S_T0}")
    a("v_mul_u32_u24 v21, 2560, v22")
    a("v_add_u32 v4, v21, v23")
    a(f"s_mul_i32 s{S_T1}, s{S_T2}, {16*2560}")
    a(f"s_lshl_b32 s{S_T0}, s{S_G}, 7")
    a(f"s_add_u32 s{S_T1}, s{S_T1}, s{S_T0}")
    a(f"s_lshr_b32 s{S_T0}, s{S_WAVE}, 1")
    a(f"s_lshl_b32 s{S_T0}, s{S_T0}, 6")
    a(f"s_add_u32 s{S_T1}, s{S_T1}, s{S_T0}")
    for mt in range(3):
        for t in range(2):
            acc = V_ACC + 4 * (2 * mt + t)
            d = 6 + 2 * (2 * mt + t)
            a(f"v_cvt_pk_bf16_f32 v{d}, v{acc}, v{acc+1}")
            a(f"v_cvt_pk_bf16_f32 v{d+1}, v{acc+2}, v{acc+3}")
            a(f"ds_write_b64 v2, v[{d}:{d+1}] offset:{1280*mt + 32*t}")
    for mt in range(3):
        a(f"ds_read_b128 v[{52+4*mt}:{55+4*mt}], v3 offset:{1280*mt}")
    for mt in range(3):
        a(f"s_add_u32 s53, s{S_T2}, {mt}")
        a("s_cmp_ge_u32 s53, 128")
        a(f"s_cbranch_scc1 {endlbl}")
        a(f"s_waitcnt lgkmcnt({2-mt})")
        a(f"buffer_store_dwordx4 v[{52+4*mt}:{55+4*mt}], v4, s[{SRD_2}:{SRD_2+3}], s{S_T1} offen {CFG['wto']}")
        a(f"s_add_u32 s{S_T1}, s{S_T1}, {16*2560}")

def role_p3(a):
    S_RQ, S_ST, S_A, S_B = 44, 45, 46, 47
    VA = 2
    V_WA_, V_RA, V_N, V_H, V_A0, V_T0, V_T1, V_T2 = 7, 8, 9, 10, 11, 12, 13, 14
    LD, B1R, B1I, TC, TS, B2C, A1, A2, U, D, TM, OUT = 16, 40, 46, 52, 68, 84, 100, 112, 144, 208, 240, 248
    srd(a, SRD_2, S_OUT, NOUT)
    a(f"s_lshl_b32 s{S_RQ}, s{S_L}, 1")
    a(f"s_add_u32 s{S_RQ}, s{S_RQ}, s{S_WAVE}")
    a(f"s_sub_u32 s{S_RQ}, s{S_RQ}, 4")
    a(f"s_mul_i32 s{S_A}, s{S_RQ}, {PITCH}")
    a(f"s_add_u32 s{S_A}, s{S_A}, {ZQ}")
    a(f"s_add_u32 s{S_B}, s{S_A}, 4096")
    a(f"v_and_b32 v{V_N}, 31, v1")
    a(f"v_lshrrev_b32 v{V_H}, 5, v1")
    a(f"v_lshlrev_b32 v{V_T0}, 4, v{V_N}")
    a(f"v_lshl_add_u32 v{V_T1}, v{V_H}, 11, v{V_T0}")
    a(f"v_lshl_add_u32 v{V_T2}, v{V_H}, 10, v{V_T0}")
    for lam in range(4):
        a(f"buffer_load_dwordx4 v[{LD+4*lam}:{LD+4*lam+3}], v{V_T1}, s[{SRD_WS}:{SRD_WS+3}], s{S_A} offen offset:{512*lam}")
    for i in range(8): a(f"v_mov_b32 v{LD+16+i}, 0")
    a("s_mov_b32 exec_hi, 1")
    a(f"buffer_load_dwordx4 v[{LD+16}:{LD+19}], v{V_T2}, s[{SRD_WS}:{SRD_WS+3}], s{S_B} offen")
    a("s_mov_b32 exec_hi, 0")
    a(f"buffer_load_dwordx4 v[{LD+20}:{LD+23}], v{V_T2}, s[{SRD_WS}:{SRD_WS+3}], s{S_B} offen offset:512")
    a("s_mov_b32 exec_hi, -1")
    tm = U
    a(f"v_cvt_f32_u32 v{V_T0}, v{V_N}")
    a(f"v_cvt_f32_u32 v{V_T1}, v{V_H}")
    a(f"v_mul_f32 v{V_A0}, {f32(1/20)}, v{V_T0}")
    a(f"v_mul_f32 v{V_T2}, v{V_T1}, v{V_A0}")
    a(f"s_mov_b32 s{S_B}, {f32(2.0/(2048*640))}")
    for lam in range(6):
        k, hm = (lam, 4.0) if lam < 4 else (8 + lam - 4, 2.0)
        a(f"v_mul_f32 v{tm+32}, {hm}, v{V_T2}")
        a(f"v_fmac_f32 v{tm+32}, {f32(k)}, v{V_A0}")
        sincos_angles(a, tm + 2 * lam, tm + 2 * lam + 1, tm + 32, tm + 33)
    a("s_nop 0")
    for j in range(12): a(f"v_mul_f32 v{tm+j}, s{S_B}, v{tm+j}")
    for lam in range(6):
        a(f"v_cvt_pk_bf16_f32 v{B1R+lam}, v{tm+2*lam}, -v{tm+2*lam+1}")
        a(f"v_cvt_pk_bf16_f32 v{B1I+lam}, v{tm+2*lam+1}, v{tm+2*lam}")
    a(f"v_mul_f32 v{V_A0}, {f32(1/640)}, v{V_T0}")
    a(f"v_mul_f32 v{V_T2}, 4.0, v{V_T1}")
    a(f"v_mul_f32 v{V_T2}, v{V_T2}, v{V_A0}")
    for r in range(16):
        a(f"v_fmamk_f32 v{tm+32}, v{V_A0}, {f32(8*(r>>2) + (r&3))}, v{V_T2}")
        sincos_angles(a, TC + r, TS + r, tm + 32, tm + 33)
    a(f"v_mul_f32 v{V_A0}, {f32(1/32)}, v{V_T0}")
    a(f"v_mul_f32 v{V_T2}, 4.0, v{V_T1}")
    a(f"v_mul_f32 v{V_T2}, v{V_T2}, v{V_A0}")
    for r in range(16):
        a(f"v_fmamk_f32 v{tm+32}, v{V_A0}, {f32(8*(r>>2) + (r&3))}, v{V_T2}")
        sincos_angles(a, tm + 2 * r, tm + 2 * r + 1, tm + 32, tm + 33)
    a("s_nop 0")
    for r in range(16): a(f"v_cvt_pk_bf16_f32 v{B2C+r}, v{tm+2*r}, -v{tm+2*r+1}")
    a(f"s_sub_u32 s{S_ST}, s{S_WAVE}, 4")
    a(f"s_mul_i32 s{S_ST}, s{S_ST}, 5120")
    a(f"s_add_u32 s{S_ST}, s{S_ST}, {G_STAGE}")
    a(f"v_mul_u32_u24 v{V_T0}, 40, v{V_N}")
    a(f"v_lshlrev_b32 v{V_T1}, 3, v{V_H}")
    a(f"v_add3_u32 v{V_WA_}, v{V_T0}, v{V_T1}, s{S_ST}")
    a(f"v_lshl_add_u32 v{V_RA}, v1, 4, s{S_ST}")
    for t in range(5):
        a(f"v_add_u32 v{V_T0}, {64*t}, v1")
        a(f"v_mul_u32_u24 v{V_T1}, 820, v{V_T0}")
        a(f"v_lshrrev_b32 v{V_T1}, 16, v{V_T1}")
        a(f"v_mul_u32_u24 v{V_T1}, 80640, v{V_T1}")
        a(f"v_lshl_add_u32 v{VA+t}, v{V_T0}, 4, v{V_T1}")
    a(f"s_lshr_b32 s{S_A}, s{S_RQ}, 5")
    a(f"s_lshl_b32 s{S_A}, s{S_A}, 7")
    a(f"s_and_b32 s{S_B}, s{S_RQ}, 31")
    a(f"s_add_u32 s{S_A}, s{S_A}, s{S_B}")
    a(f"s_mul_i32 s{S_A}, s{S_A}, 2560")
    a(f"s_add_u32 s{S_A}, s{S_A}, 1280")
    M, X8 = "v_mfma_f32_32x32x16_bf16", "v_mfma_f32_32x32x8_bf16"
    R = lambda b, n: f"v[{b}:{b+n-1}]"
    def MV(i): return [f"v_mov_b32 v{A1+6*(i&1)+lam}, v{LD+4*lam+i}" for lam in range(6)]
    def S1(i):
        x = A1 + 6 * (i & 1); ur = U + 32 * (i & 1); ui = ur + 16
        return [f"{M} {R(ur,16)}, {R(x,4)}, {R(B1R,4)}, 0", f"{M} {R(ui,16)}, {R(x,4)}, {R(B1I,4)}, 0",
                f"{X8} {R(ur,16)}, {R(x+4,2)}, {R(B1R+4,2)}, {R(ur,16)}", f"{X8} {R(ui,16)}, {R(x+4,2)}, {R(B1I+4,2)}, {R(ui,16)}"]
    def TW(i):
        o = []
        ur = U + 32 * (i & 1); ui = ur + 16; a2 = A2 + 16 * (i & 1)
        for p in range(8):
            t = TM + 4 * (p & 1)
            o += cmul_pk(ur + 2*p, ui + 2*p, TC + 2*p, TS + 2*p, t, t + 2, conj=True)
            o.append(f"v_cvt_pk_bf16_f32 v{a2+2*p}, v{t}, v{t+2}")
            o.append(f"v_cvt_pk_bf16_f32 v{a2+2*p+1}, v{t+1}, v{t+3}")
        return o
    def S2(i):
        d = D + 16 * (i & 1); a2 = A2 + 16 * (i & 1)
        return [f"{M} {R(d,16)}, {R(a2+4*u,4)}, {R(B2C+4*u,4)}, " + ("0" if u == 0 else R(d, 16)) for u in range(4)]
    def OUTW(i):
        d = D + 16 * (i & 1)
        o = [f"v_cvt_pk_bf16_f32 v{OUT+j}, v{d+2*j}, v{d+2*j+1}" for j in range(6)]
        o += [f"ds_write_b64 v{V_WA_}, {R(OUT+2*q,2)} offset:{1280*i + 16*q}" for q in range(2)]
        o += ["s_mov_b32 exec_hi, 0", f"ds_write_b64 v{V_WA_}, {R(OUT+4,2)} offset:{1280*i + 32}", "s_mov_b32 exec_hi, -1"]
        return o
    a("s_waitcnt vmcnt(0)")
    for l in MV(0) + MV(1) + S1(0) + S1(1) + MV(2): a(l)
    a.nop(2)
    for l in TW(0): a(l)
    for l in S1(2) + MV(3): a(l)
    for l in interleave_front(TW(1), S2(0)): a(l)
    for l in S1(3) + OUTW(0): a(l)
    for l in interleave_front(TW(2), S2(1)): a(l)
    for l in OUTW(1): a(l)
    for l in interleave_front(TW(3), S2(2)): a(l)
    a.nop(2)
    for l in S2(3) + OUTW(2): a(l)
    a.nop(1)
    for l in OUTW(3): a(l)
    for t in range(5): a(f"ds_read_b128 {R(U+4*t,4)}, v{V_RA} offset:{1024*t}")
    for t in range(5):
        a(f"s_waitcnt lgkmcnt({4-t})")
        a(f"buffer_store_dwordx4 {R(U+4*t,4)}, v{VA+t}, s[{SRD_2}:{SRD_2+3}], s{S_A} offen {CFG['wto']}")

def k3(a, name="outp_kernel"):
    end = name + "_end"
    kernel_head(a, name)
    prologue(a, end, G_FLG)
    lp3 = a.newlabel("Lp3")
    a(f"s_cmp_ge_u32 s{S_WAVE}, 4")
    a(f"s_cbranch_scc1 {lp3}")
    gemm_setup(a, "k3", 10, 220, end)
    gemm_w_dense(a, S_WO)
    gemm_first_dma(a, "k3")
    gemm_main(a, "k3", "O")
    epi_o(a, end)
    a("s_endpgm")
    a.label(lp3)
    role_p3(a)
    a.label(end)
    a("s_endpgm")
    return (name, 256, 384, G_LDS)
```
